```python
import torch

def _softmax(x, axis=-1):
    return torch.softmax(x, dim=axis)
def _gelu(x):
    return torch.nn.functional.gelu(x, approximate="tanh")
def _silu(x):
    return torch.nn.functional.silu(x)
def _sigmoid(x):
    return torch.sigmoid(x)
def _layernorm(x, axis=-1, eps=1e-5):
    m = x.mean(dim=axis, keepdim=True)
    v = x.var(dim=axis, keepdim=True, unbiased=False)
    return (x - m) / torch.sqrt(v + eps)
def _scatter_add(tgt, idx, src, axis=0):
    return tgt.clone().index_add_(axis, idx, src)
def _segment_sum(src, seg, n):
    out = torch.zeros((n,) + src.shape[1:], dtype=src.dtype)
    return out.index_add_(0, seg, src)
def _pad(x, pw):
    flat = tuple(v for pair in reversed(pw) for v in pair)
    return torch.nn.functional.pad(x, flat)

kernel_name = 'parallel_sum__softmax_full_mha__mixer_s_mlp__prompt'

def setup_inputs():

    _w = (lambda a: (lambda t: t.to(torch.bfloat16) if t.is_floating_point() else t)(torch.as_tensor(a)))
    def _A_setup():
        B, S, D = 1, 2048, 576
        return {
            "x": _w((lambda *s: torch.randn(*s, dtype=torch.bfloat16) * 0.05)(B, S, D)),
            "wqkv": _w((lambda *s: torch.randn(*s, dtype=torch.bfloat16) * 0.1)(D, 3 * D)),
            "wo": _w((lambda *s: torch.randn(*s, dtype=torch.bfloat16) * 0.05)(D, D)),
        }
    _A_in = _A_setup()

    def _B_setup():
        B, S, D, F = 1, 2048, 576, 4608
        return {
            "x":  _w((lambda *s: torch.randn(*s, dtype=torch.bfloat16) * 0.05)(B, S, D)),
            "w1": _w((lambda *s: torch.randn(*s, dtype=torch.bfloat16) * 3.2)(D, D) * (D ** -0.5)),
            "w2": _w((lambda *s: torch.randn(*s, dtype=torch.bfloat16) * 3.2)(D, D) * (D ** -0.5)),
            "w3": _w((lambda *s: torch.randn(*s, dtype=torch.bfloat16) * 3.2)(D, F) * (D ** -0.5)),
            "w4": _w((lambda *s: torch.randn(*s, dtype=torch.bfloat16) * 3.2)(F, D) * (F ** -0.5)),
        }
    _B_in = _B_setup()

    return {
        "A_x": _A_in["x"],
        "A_wqkv": _A_in["wqkv"],
        "A_wo": _A_in["wo"],
        "B_x": _B_in["x"],
        "B_w1": _B_in["w1"],
        "B_w2": _B_in["w2"],
        "B_w3": _B_in["w3"],
        "B_w4": _B_in["w4"],
    }

def reference(A_x, A_wqkv, A_wo, B_x, B_w1, B_w2, B_w3, B_w4):
    def _A_ref(x, wqkv, wo):
        B, S, D = x.shape
        H = 32; Dh = D // H
        qkv = (lambda x, *d: x.permute(*d))((x @ wqkv).reshape(B, S, 3, H, Dh), 2, 0, 3, 1, 4)
        q, k, v = qkv[0], qkv[1], qkv[2]
        scale = Dh ** -0.5
        scores = torch.einsum("bhqd,bhkd->bhqk", q, k) * scale
        p = _softmax(scores, axis=-1)
        o = torch.einsum("bhqk,bhkd->bhqd", p, v)
        return (lambda x, *d: x.permute(*d))(o, 0, 2, 1, 3).reshape(B, S, D) @ wo

    def _B_ref(x, w1, w2, w3, w4):
        B, S, D = x.shape
        h = _gelu(_layernorm(x, axis=-1) @ w1)
        c = D // 4
        g0 = _pad(h[:, :, 0*c:1*c], ((0, 0), (1, 0), (0, 0)))[:, :S, :]
        g1 = _pad(h[:, :, 1*c:2*c], ((0, 0), (0, 1), (0, 0)))[:, 1:, :]
        g2 = _pad(h[:, :, 2*c:3*c], ((0, 0), (2, 0), (0, 0)))[:, :S, :]
        g3 = _pad(h[:, :, 3*c:   ], ((0, 0), (0, 2), (0, 0)))[:, 2:, :]
        hs = torch.concatenate([g0, g1, g2, g3], axis=-1) @ w2
        x1 = x + hs
        h2 = _gelu(_layernorm(x1, axis=-1) @ w3) @ w4
        return x1 + h2

    x = A_x
    xn = _layernorm(x, axis=-1)
    return x + _A_ref(xn, A_wqkv, A_wo) + _B_ref(xn, B_w1, B_w2, B_w3, B_w4)
```

```python
class Asm:
    def __init__(self):
        self.lines = []
        self.uid = 0
    def __call__(self, s=''):
        for ln in s.split('\n'):
            ln = ln.strip()
            if not ln: continue
            self.lines.append(ln if ln.endswith(':') or ln.startswith('.') else '  ' + ln)
    def label(self, base):
        self.uid += 1
        return f'L{base}_{self.uid}'
    def text(self):
        return '\n'.join(self.lines) + '\n'

def v(a, n=1):
    return f'v{a}' if n == 1 else f'v[{a}:{a+n-1}]'
def s(a, n=1):
    return f's{a}' if n == 1 else f's[{a}:{a+n-1}]'

def kernel_begin(A, name):
    A('.text'); A(f'.globl {name}'); A('.p2align 8'); A(f'.type {name},@function'); A(f'{name}:')

def kernel_desc(name, nvgpr, nsgpr=96):
    acc = min(256, (nvgpr + 3)//4*4)
    return f'''.section .rodata,"a"
.p2align 6
.amdhsa_kernel {name}
  .amdhsa_next_free_vgpr {nvgpr}
  .amdhsa_next_free_sgpr {nsgpr}
  .amdhsa_accum_offset {acc}
  .amdhsa_group_segment_fixed_size 0
  .amdhsa_kernarg_size 88
  .amdhsa_user_sgpr_count 2
  .amdhsa_user_sgpr_kernarg_segment_ptr 1
  .amdhsa_system_sgpr_workgroup_id_x 1
  .amdhsa_float_denorm_mode_32 3
.end_amdhsa_kernel
'''

def interleave(main, fill):
    out = []; n = len(main); m = len(fill); k = 0
    for i, x in enumerate(main):
        out.append(x)
        upto = m*(i+1)//n
        out += fill[k:upto]; k = upto
    return out

import struct
def f32(x):
    return '0x%08x' % struct.unpack('<I', struct.pack('<f', x))[0]

import os
STAMPS = os.environ.get('STAMPS') == '1'
def stamp(A, k):
    if not STAMPS: return
    A(f's_memtime s[{64+4*k}:{65+4*k}]')
    A(f's_memrealtime s[{66+4*k}:{67+4*k}]')
def stamp_flush(A, region, s_wg, srd=12, nst=8):
    if not STAMPS: return
    A('s_waitcnt lgkmcnt(0)')
    A('s_mov_b64 exec, 1')
    A(f'v_lshrrev_b32 v2, 6, v0')
    A(f's_lshl_b32 s63, s{s_wg}, 3')
    A(f'v_add_u32 v2, s63, v2')
    A(f'v_lshlrev_b32 v2, 6, v2')
    A(f'v_add_u32 v2, {region}, v2')
    for k in range(nst):
        A(f'v_mov_b32 v4, s{64+4*k}')
        A(f'v_mov_b32 v5, s{66+4*k}')
        A(f'buffer_store_dwordx2 v[4:5], v2, s[{srd}:{srd+3}], 0 offen offset:{8*k}')
        A('s_nop 1')
```

```python
from asmlib import *
from layout import *
from mlp import flag_store

import os
MODE = os.environ.get('AMODE', 'base')
SLOTA = 22528
L_FLAG = 2*SLOTA
ATT_LDS = L_FLAG + 64
ATT_NV = 160

def gen_att(A, s_id, prio=None, inline0=False, li=1, prefetch=None, red=None):
    sWS = 12
    s_w, s_head, s_qb, s_off, s_ko, s_vo, s_m, s_t, s_t2, s_cnt, s_cur, s_fb, s_k0, s_v0 = 20,21,22,23,24,25,26,27,28,29,30,31,32,33
    vln, vDs, vKa, vKr, vVa, vt0, vt1, vt2, vQo = 1,2,3,4,5,6,7,8,9
    vK0, vKr0, vV0, vInf = 10, 11, 60, 61
    QM = [12, 16]; QR = [20, 22]; KM = [24, 28]; KR = [32, 34]; V = [[36, 40], [44, 48]]; P = 52
    Sx = [64, 80]; O = [96, 112]; NM = [128, 144]
    stamp(A, 0)
    A('s_setprio 3')
    A(f'''s_load_dwordx2 s[12:13], s[0:1], {ARG['ws']}
    v_lshrrev_b32 {v(vt0)}, 6, v0
    v_and_b32 {v(vln)}, 63, v0
    v_readfirstlane_b32 {s(s_w)}, {v(vt0)}
    s_and_b32 {s(s_head)}, {s(s_id)}, 7
    s_lshl_b32 {s(s_head)}, {s(s_head)}, 2
    s_bfe_u32 {s(s_t)}, {s(s_id)}, 0x20003
    s_add_u32 {s(s_head)}, {s(s_head)}, {s(s_t)}
    s_lshr_b32 {s(s_qb)}, {s(s_id)}, 5
    s_mul_i32 {s(s_t)}, {s(s_head)}, 18
    s_and_b32 {s(s_off)}, {s(s_t)}, 7
    s_lshr_b32 {s(s_t)}, {s(s_t)}, 3
    s_lshl_b32 {s(s_t)}, {s(s_t)}, 15
    s_add_u32 {s(s_k0)}, {s(s_t)}, {TK}
    s_mul_i32 {s(s_v0)}, {s(s_head)}, {64*1280}
    s_add_u32 {s(s_v0)}, {s(s_v0)}, {VB}
    v_lshlrev_b32 {v(vDs)}, 4, v0
    s_lshl_b32 {s(s_m)}, {s(s_w)}, 10
    s_mov_b32 s14, {WS_BYTES}
    s_mov_b32 s15, 0x20000
    s_mov_b32 {s(s_fb)}, 0''')
    def dma(sbase):
        skip = A.label('v3')
        r = []
        for gi in range(3):
            r += [f's_add_u32 m0, {s(sbase)}, {gi*4096}',
                  f's_add_u32 {s(s_t2)}, {s(s_ko)}, {gi*GP}',
                  f'buffer_load_dwordx4 {v(vDs)}, {s(sWS,4)}, {s(s_t2)} offen lds']
        for i in range(2):
            r += [f's_add_u32 m0, {s(sbase)}, {12288+i*4096}',
                  f's_add_u32 {s(s_t2)}, {s(s_vo)}, {i*4096}',
                  f'buffer_load_dwordx4 {v(vDs)}, {s(sWS,4)}, {s(s_t2)} offen lds']
        r += [f's_cmp_ge_u32 {s(s_w)}, 2', f's_cbranch_scc1 {skip}',
              f's_add_u32 m0, {s(sbase)}, {12288+8192}',
              f's_add_u32 {s(s_t2)}, {s(s_vo)}, 8192',
              f'buffer_load_dwordx4 {v(vDs)}, {s(sWS,4)}, {s(s_t2)} offen lds',
              f'{skip}:',
              f's_add_u32 {s(s_ko)}, {s(s_ko)}, 4096',
              f's_add_u32 {s(s_vo)}, {s(s_vo)}, 10240']
        return r
    A(f'''v_lshrrev_b32 {v(vt0)}, 5, {v(vln)}
    v_and_b32 {v(vt1)}, 31, {v(vln)}
    v_lshlrev_b32 {v(vQo)}, 15, {v(vt0)}
    v_lshl_add_u32 {v(vQo)}, {v(vt1)}, 4, {v(vQo)}
    v_lshlrev_b32 {v(vt2)}, 4, {v(vt1)}
    v_lshl_add_u32 {v(vt2)}, {v(vt0)}, 3, {v(vt2)}
    s_lshl_b32 {s(s_t)}, {s(s_qb)}, 2
    s_add_u32 {s(s_t)}, {s(s_t)}, {s(s_w)}
    s_lshl_b32 {s(s_t)}, {s(s_t)}, 10
    s_add_u32 {s(s_t)}, {s(s_t)}, {s(s_k0)}
    s_sub_u32 {s(s_t)}, {s(s_t)}, {TK-TQ}
    s_mov_b32 {s(s_ko)}, {s(s_k0)}
    s_mov_b32 {s(s_vo)}, {s(s_v0)}
    s_waitcnt lgkmcnt(0)''')
    for ln in dma(s_m): A(ln)
    A(f'''buffer_load_dwordx4 {v(QM[0],4)}, {v(vQo)}, {s(sWS,4)}, {s(s_t)} offen
    buffer_load_dwordx4 {v(QM[1],4)}, {v(vQo)}, {s(sWS,4)}, {s(s_t)} offen offset:512
    s_add_u32 {s(s_t)}, {s(s_t)}, {2*GP}
    v_add_u32 {v(vKr0)}, 8192, {v(vt2)}
    buffer_load_dwordx2 {v(QR[0],2)}, {v(vt2)}, {s(sWS,4)}, {s(s_t)} offen
    buffer_load_dwordx2 {v(QR[1],2)}, {v(vt2)}, {s(sWS,4)}, {s(s_t)} offen offset:512
    s_setprio {prio}
    v_lshlrev_b32 {v(vK0)}, 12, {v(vt0)}
    v_lshl_add_u32 {v(vK0)}, {v(vt1)}, 4, {v(vK0)}
    v_min_u32 {v(vt2)}, 19, {v(vt1)}
    v_mul_u32_u24 {v(vV0)}, 320, {v(vt0)}
    v_add_u32 {v(vV0)}, 12288, {v(vV0)}
    v_lshl_add_u32 {v(vV0)}, {v(vt2)}, 4, {v(vV0)}
    v_mov_b32 {v(vInf)}, 0x7f800000
    v_mov_b32 {v(vt2)}, {L_FLAG}
    v_mov_b32 {v(vt1)}, 0
    ds_write_b32 {v(vt2)}, {v(vt1)}''')
    for q in range(2):
        for i in range(16): A(f'v_mov_b32 {v(NM[q]+i)}, 0')
    if prefetch: prefetch(A, 'setup')
    if red: next(red)
    A(f'''v_lshlrev_b32 {v(vt1)}, 3, {v(vt0)}
    v_lshlrev_b32 {v(vt0)}, 2, {v(vt0)}
    s_waitcnt vmcnt(0)''')
    for d in range(4):
        A(f'''v_add_u32 {v(vt2)}, {2*d}, {v(vt1)}
        v_cmp_le_u32 vcc, {s(s_off)}, {v(vt2)}
        s_nop 1''')
        for q in range(2): A(f'v_cndmask_b32 {v(QM[q]+d)}, 0, {v(QM[q]+d)}, vcc')
    for d in range(2):
        A(f'''v_add_u32 {v(vt2)}, {2*d}, {v(vt0)}
        v_cmp_ge_u32 vcc, {s(s_off)}, {v(vt2)}
        s_nop 1''')
        for q in range(2): A(f'v_cndmask_b32 {v(QR[q]+d)}, 0, {v(QR[q]+d)}, vcc')

    def rdK(kt, buf):
        return [f'ds_read_b128 {v(KM[buf],4)}, {v(vKa)} offset:{kt*512}', f'ds_read_b64 {v(KR[buf],2)}, {v(vKr)} offset:{kt*512}']
    def rdV(kt, buf):
        return [f'ds_read_b128 {v(V[buf][0],4)}, {v(vVa)} offset:{kt*1280}', f'ds_read_b128 {v(V[buf][1],4)}, {v(vVa)} offset:{kt*1280+640}']
    def qk(kb, q, zero=False):
        c = '0' if (zero or inline0) else v(NM[q],16)
        return [f'v_mfma_f32_32x32x8_bf16 {v(Sx[q],16)}, {v(KR[kb],2)}, {v(QR[q],2)}, {c}',
                f'v_mfma_f32_32x32x16_bf16 {v(Sx[q],16)}, {v(KM[kb],4)}, {v(QM[q],4)}, {v(Sx[q],16)}']
    def pv(vb, mf, q):
        return f'v_mfma_f32_32x32x16_bf16 {v(O[q],16)}, {v(V[vb][mf],4)}, {v(P+4*mf,4)}, {v(O[q],16)}'

    start, loop, nodma = A.label('astart'), A.label('aloop'), A.label('nodma')
    A(f'''{start}:
    s_waitcnt lgkmcnt(0)
    s_barrier
    s_add_u32 {s(s_t)}, {s(s_m)}, {SLOTA}''')
    for ln in dma(s_t): A(ln)
    A(f'''v_mov_b32 {v(vKa)}, {v(vK0)}
    v_mov_b32 {v(vKr)}, {v(vKr0)}
    v_mov_b32 {v(vVa)}, {v(vV0)}''')
    for ln in rdK(0, 0) + rdV(0, 0) + rdK(1, 1): A(ln)
    for q in range(2):
        for i in range(16): A(f'v_mov_b32 {v(O[q]+i)}, 0')
    for i in range(8):
        A(f'v_mov_b32 {v(P+i)}, 0'); A(f'v_mov_b32 {v(V[1][0]+i)}, 0')
    A(f'''s_mov_b32 {s(s_cnt)}, 0
    s_mov_b32 {s(s_cur)}, {SLOTA}
    s_waitcnt lgkmcnt(4)''')
    for ln in qk(0, 0): A(ln)
    stamp(A, 1)
    A('s_nop 7\ns_nop 3')
    A('.p2align 6')
    A(f'{loop}:')
    for kt in range(8):
        for q in range(2):
            sr = Sx[q]
            e = [f'v_exp_f32 {v(sr+i)}, {v(sr+i)}' for i in range(16)]
            c = [f'v_cvt_pk_bf16_f32 {v(P+i)}, {v(sr+2*i)}, {v(sr+2*i+1)}' for i in range(8)]
            pre, ra, rb, w2, w4, post = [], [], [], [], [], []
            if q == 0:
                m1 = pv((kt-1) & 1, 1, 1); m2, m3 = qk(kt & 1, 1); m4 = pv(kt & 1, 0, 0)
                w4 = ['s_waitcnt lgkmcnt(4)']
                if kt == 7: ra.append(f'v_add_u32 {v(vVa)}, {s(s_cur)}, {v(vVa)}')
                ra += rdV((kt+1) % 8, (kt+1) & 1)
            else:
                m1 = pv(kt & 1, 1, 0); m2, m3 = qk((kt+1) & 1, 0); m4 = pv(kt & 1, 0, 1)
                w2 = ['s_waitcnt lgkmcnt(2)']
                if kt == 6:
                    pre = ['s_waitcnt vmcnt(0) lgkmcnt(0)', 's_barrier']
                    w2 = []
                    rb += [f'v_add_u32 {v(vKa)}, {s(s_cur)}, {v(vKa)}', f'v_add_u32 {v(vKr)}, {s(s_cur)}, {v(vKr)}']
                    post = [f's_cmp_ge_u32 {s(s_cnt)}, 6', f's_cbranch_scc1 {nodma}',
                            f's_and_b32 {s(s_t)}, {s(s_cnt)}, 1', f's_mul_i32 {s(s_t)}, {s(s_t)}, {SLOTA}',
                            f's_add_u32 {s(s_t)}, {s(s_t)}, {s(s_m)}'] + dma(s_t) + (prefetch(A, 'loop') if prefetch else []) + [f'{nodma}:']
                rb += rdK((kt+2) % 8, kt & 1)
                if kt == 7:
                    rb += [f's_sub_u32 {s(s_cur)}, 0, {s(s_cur)}', f's_add_u32 {s(s_cnt)}, {s(s_cnt)}, 1', f's_cmp_lt_u32 {s(s_cnt)}, 8']
                    post = [f's_cbranch_scc1 {loop}']
                    if STAMPS:
                        post = [f's_memtime s[44:45]', 's_waitcnt lgkmcnt(0)', 's_sub_u32 s44, s44, s64', f'v_mov_b32 v170, s44', f'v_lshrrev_b32 v171, 6, v0', 's_lshl_b32 s45, s2, 3',
                                'v_add_u32 v171, s45, v171', 'v_lshlrev_b32 v171, 6, v171', f's_lshl_b32 s45, {s(s_cnt)}, 3', f's_add_u32 s45, s45, {STAMP + 2*512*8*64 - 8}',
                                'buffer_store_dword v170, v171, s[12:15], s45 offen', f's_cmp_lt_u32 {s(s_cnt)}, 8'] + post
            hi, lo = ['s_setprio 3'], [f's_setprio {prio}']
            if MODE == 'base':
                seq = pre + [e[0], e[1], e[2], m1] + ra + [c[0], e[3], e[4], c[1], e[5]] + w2 + [m2, e[6], c[2], e[7], e[8], c[3], e[9], m3] + rb + \
                      [e[10], c[4], e[11], e[12], c[5]] + w4 + [m4, e[13], e[14], e[15], c[6], c[7]] + post
            elif MODE == 'raise4':
                seq = pre + [e[0], e[1], e[2]] + hi + [m1] + lo + ra + [c[0], e[3], e[4], c[1], e[5]] + w2 + hi + [m2] + lo + [e[6], c[2], e[7], e[8], c[3], e[9]] + hi + [m3] + lo + rb + \
                      [e[10], c[4], e[11], e[12], c[5]] + w4 + hi + [m4] + lo + [e[13], e[14], e[15], c[6], c[7]] + post
            else:
                pq, pk = (1, (kt-1) & 1) if q == 0 else (0, kt & 1)
                if MODE == 'pair0': hi, lo = [], []
                seq = pre + [e[0], e[1], e[2]] + (['s_waitcnt lgkmcnt(4)'] if q == 1 and kt != 6 else []) + hi + [pv(pk, 0, pq), pv(pk, 1, pq)] + lo + ra + \
                      [c[0], e[3], e[4], c[1], e[5], e[6], c[2], e[7], e[8], c[3]] + w2 + hi + [m2, m3] + lo + rb + \
                      [e[9], e[10], c[4], e[11], e[12], c[5], e[13], e[14], e[15], c[6], c[7]] + (['s_nop 0'] if not (rb or lo) else []) + post
            for ln in seq: A(ln)
    A('s_nop 1')
    if MODE.startswith('pair'): A(pv(1, 0, 1))
    A(pv(1, 1, 1))
    stamp(A, 2)
    A('s_setprio 3')
    Lq = [vKa, vKr]; RM = [vVa, vt2]
    A(f'''s_lshl_b32 {s(s_t)}, {s(s_qb)}, 2
    s_add_u32 {s(s_t)}, {s(s_t)}, {s(s_w)}
    s_lshl_b32 {s(s_t)}, {s(s_t)}, 10
    s_lshl_b32 {s(s_t2)}, {s(s_head)}, 16
    s_add_u32 {s(s_t2)}, {s(s_t2)}, {s(s_t)}
    s_add_u32 {s(s_t2)}, {s(s_t2)}, {TO}
    s_lshr_b32 {s(s_ko)}, {s(s_head)}, 2
    s_lshl_b32 {s(s_ko)}, {s(s_ko)}, 15
    s_add_u32 {s(s_t)}, {s(s_t)}, {s(s_ko)}
    s_and_b32 {s(s_ko)}, {s(s_head)}, 3
    s_lshl_b32 {s(s_ko)}, {s(s_ko)}, 2
    s_add_u32 {s(s_t)}, {s(s_t)}, {s(s_ko)}
    s_add_u32 {s(s_t)}, {s(s_t)}, {TO + 64*GP}
    s_mov_b64 {s(36,2)}, 0
    s_waitcnt lgkmcnt(0)''')
    for q in range(2):
        o = O[q]; l = Lq[q]
        A(f'''v_mov_b32 {v(l)}, {v(o+10)}
        v_add_f32 {v(vt0)}, abs({v(o)}), abs({v(o+1)})
        v_add_f32 {v(vt1)}, abs({v(o+2)}), abs({v(o+3)})
        v_permlane32_swap_b32 {v(l)}, {v(o+10)}''')
        for i in range(4, 10, 2):
            A(f'v_add_f32 {v(vt0)}, {v(vt0)}, abs({v(o+i)})')
            A(f'v_add_f32 {v(vt1)}, {v(vt1)}, abs({v(o+i+1)})')
        A(f'''v_rcp_f32 {v(o+11)}, {v(l)}
        v_add_f32 {v(vt0)}, {v(vt0)}, {v(vt1)}
        v_cmp_nlt_f32 vcc, {v(vt0)}, {v(vInf)}
        s_or_b64 {s(36,2)}, {s(36,2)}, vcc
        v_cmp_nle_f32 vcc, {f32(2.0**-90)}, {v(l)}
        s_or_b64 {s(36,2)}, {s(36,2)}, vcc
        v_cmp_nge_f32 vcc, {f32(2.0**100)}, {v(l)}
        s_or_b64 {s(36,2)}, {s(36,2)}, vcc''')
        for i in range(10): A(f'v_mul_f32 {v(o+i)}, {v(o+11)}, {v(o+i)}')
        for i in range(4): A(f'v_cvt_pk_bf16_f32 {v(P+4*q+i)}, {v(o+2*i)}, {v(o+2*i+1)}')
        A(f'v_cvt_pk_bf16_f32 {v(RM[q])}, {v(o+8)}, {v(o+9)}')
        A(f'buffer_store_dwordx4 {v(P+4*q,4)}, {v(vQo)}, {s(sWS,4)}, {s(s_t2)} offen offset:{512*q} sc1')
    fin2 = A.label('afin2')
    fin, okw, mloop, mkt = A.label('afin'), A.label('okw'), A.label('mloop'), A.label('mkt')
    A(f'''v_lshlrev_b32 {v(vt0)}, 4, {v(vln)}
    v_permlane32_swap_b32 {v(RM[0])}, {v(RM[1])}
    buffer_store_dword {v(RM[0])}, {v(vt0)}, {s(sWS,4)}, {s(s_t)} offen sc1
    s_cmp_lg_u32 {s(s_fb)}, 0
    s_cbranch_scc1 {fin2}
    v_mov_b32 {v(vt1)}, {L_FLAG}
    s_cmp_eq_u64 {s(36,2)}, 0
    s_cbranch_scc1 {okw}
    v_mov_b32 {v(vt0)}, 1
    ds_write_b32 {v(vt1)}, {v(vt0)}
    {okw}:
    s_waitcnt lgkmcnt(0)
    s_barrier
    ds_read_b32 {v(vt0)}, {v(vt1)}
    s_waitcnt lgkmcnt(0)
    v_readfirstlane_b32 {s(s_fb)}, {v(vt0)}
    s_nop 3
    s_cmp_eq_u32 {s(s_fb)}, 0
    s_cbranch_scc1 {fin}''')
    A(f'''s_mov_b32 {s(s_ko)}, {s(s_k0)}
    s_mov_b32 {s(s_vo)}, {s(s_v0)}
    s_mov_b32 {s(s_cnt)}, 0
    v_mov_b32 {v(NM[0])}, 0xff800000
    v_mov_b32 {v(NM[1])}, 0xff800000
    {mloop}:
    s_waitcnt vmcnt(0)
    s_barrier''')
    for ln in dma(s_m): A(ln)
    A(f'''v_mov_b32 {v(vKa)}, {v(vK0)}
    v_mov_b32 {v(vKr)}, {v(vKr0)}
    s_mov_b32 {s(s_cur)}, 0
    s_waitcnt vmcnt(0)
    s_barrier
    {mkt}:''')
    for ln in rdK(0, 0): A(ln)
    A(f'''v_add_u32 {v(vKa)}, 512, {v(vKa)}
    v_add_u32 {v(vKr)}, 512, {v(vKr)}
    s_waitcnt lgkmcnt(0)''')
    for q in range(2):
        for ln in qk(0, q, zero=True): A(ln)
    A('s_nop 15')
    for q in range(2):
        for i in range(0, 16, 2): A(f'v_max3_f32 {v(NM[q])}, {v(Sx[q]+i)}, {v(Sx[q]+i+1)}, {v(NM[q])}')
    A(f'''s_add_u32 {s(s_cur)}, {s(s_cur)}, 1
    s_cmp_lt_u32 {s(s_cur)}, 8
    s_cbranch_scc1 {mkt}
    s_add_u32 {s(s_cnt)}, {s(s_cnt)}, 1
    s_cmp_lt_u32 {s(s_cnt)}, 8
    s_cbranch_scc1 {mloop}''')
    for q in range(2):
        A(f'''v_mov_b32 {v(vt0)}, {v(NM[q])}
        s_nop 1
        v_permlane32_swap_b32 {v(vt0)}, {v(NM[q])}
        v_max_f32 {v(vt0)}, {v(vt0)}, {v(NM[q])}''')
        for i in range(16): A(f'v_sub_f32 {v(NM[q]+i)}, 0, {v(vt0)}')
    A(f'''s_mov_b32 {s(s_ko)}, {s(s_k0)}
    s_mov_b32 {s(s_vo)}, {s(s_v0)}
    s_barrier''')
    for ln in dma(s_m): A(ln)
    A(f'''s_waitcnt vmcnt(0)
    s_branch {start}
    {fin2}:
    s_barrier
    {fin}:''')
    if not red:
        if STAMPS: A('s_waitcnt vmcnt(0)')
        stamp(A, 3)
        stamp_flush(A, STAMP + li*512*8*64, 2)
        A('s_endpgm')
        return
    n = next(red)
    A(f'''s_lshl_b32 {s(s_t)}, {s(s_qb)}, 2
    s_add_u32 {s(s_t)}, {s(s_t)}, {s(s_w)}
    s_lshl_b32 {s(s_t)}, {s(s_t)}, 5
    s_add_u32 {s(s_t)}, {s(s_t)}, {s(s_head)}
    s_lshl_b32 {s(s_t)}, {s(s_t)}, 2
    s_add_u32 {s(s_t)}, {s(s_t)}, {OF}
    s_waitcnt vmcnt({n})''')
    flag_store(A, s_t, vt0, vt1)
    stamp(A, 3)
    for _ in red: pass
```

```python
import math
from asmlib import *
from layout import *

import os
STF = os.environ.get('K1ST', 'sc1')
SLOT = 17408; NSLOT = 9
L_STM = SLOT*NSLOT; L_STR = L_STM + 512; L_CS = L_STR + 512
K1_LDS = L_CS + 640
QS = (DH ** -0.5) * math.log2(math.e)
C1 = -2.0*math.sqrt(2.0/math.pi)*math.log2(math.e); C2 = C1*0.044715

def gelu_block(A, regs, tmp, c1, c2, ir):
    n = len(tmp)
    for b in range(0, len(regs), n):
        rs = regs[b:b+n]
        for r, t in zip(rs, tmp): A(f'v_mul_f32 {v(t)}, {v(r)}, {v(r)}')
        for r, t in zip(rs, tmp): A(f'v_fma_f32 {v(t)}, {v(t)}, {v(c2)}, {v(c1)}')
        for r, t in zip(rs, tmp): A(f'v_mul_f32 {v(t)}, {v(t)}, {v(r)}')
        for r, t in zip(rs, tmp): A(f'v_exp_f32 {v(t)}, {v(t)}')
        for r, t in zip(rs, tmp): A(f'v_fma_f32 {v(t)}, {v(t)}, {v(ir)}, {v(ir)}')
        for r, t in zip(rs, tmp): A(f'v_rcp_f32 {v(t)}, {v(t)}')
        for r, t in zip(rs, tmp): A(f'v_mul_f32 {v(r)}, {v(r)}, {v(t)}')

def code_prefetch(A, start, end, nwaves, s_w, s_i, stmp, vtmp, vdst, nparts=32):
    lab = A.label('pc')
    A(f's_getpc_b64 {s(stmp,2)}')
    A(f'{lab}:')
    A(f's_add_u32 {s(stmp)}, {s(stmp)}, {start}-{lab}')
    A(f's_addc_u32 {s(stmp+1)}, {s(stmp+1)}, (({start}-{lab})>>32)')
    A(f's_mul_i32 {s(stmp+2)}, {s(s_i)}, {nwaves}')
    A(f's_add_u32 {s(stmp+2)}, {s(stmp+2)}, {s(s_w)}')
    A(f's_lshl_b32 {s(stmp+2)}, {s(stmp+2)}, 8')
    A(f'v_and_b32 {v(vtmp)}, 63, v0')
    A(f'v_lshlrev_b32 {v(vtmp)}, 2, {v(vtmp)}')
    A(f'v_add_u32 {v(vtmp)}, {s(stmp+2)}, {v(vtmp)}')
    A(f'v_min_u32 {v(vtmp)}, {end}-{start}-4, {v(vtmp)}')
    A(f'global_load_dword {v(vdst)}, {v(vtmp)}, {s(stmp,2)}')

def gen_k1(A, name, code_start, code_end):
    sX, sW, sWS, sW2 = 4, 8, 12, 16
    s_w, s_tg, s_cg, s_rb, s_cb, s_pw, s_ox, s_ow, s_stepw, s_mx, s_mw, s_t = 20,21,22,23,24,25,26,27,28,29,30,31
    s_ex = 32; s_m1, s_m2, s_m3, s_md = 34, 36, 38, 40; s_t2 = 42; s_i = 46; s_cbl = 47; s_ob = 48; s_kd = 49; s_kc = 50; s_tx = 51; s_br = 52
    vXs, vWs, vW9 = 1, 2, 3
    vXa, vWa, vCa = 4, 7, 10
    vln = 13; vt0, vt1, vt2 = 14, 15, 16
    vones = 20
    vbar = 24
    vpf = 19; vPx, vPw = 210, 211
    LEAD = int(os.environ.get('LEAD', 4))
    FR = [32, 64]
    ACC = 96
    ACS = 136
    AC4 = 140
    AG = [140, 144]; AS = [148, 152]
    E = 156
    NV = 216
    kernel_begin(A, name)
    done = A.label('done'); done2 = A.label('done2')
    stamp(A, 0)
    A(f'''s_cmp_ge_u32 s2, 256
    s_cbranch_scc1 {done2}
    s_load_dwordx4 s[4:7], s[0:1], {ARG['x']}
    s_load_dwordx4 s[16:19], s[0:1], {ARG['w1']}
    s_load_dwordx2 s[12:13], s[0:1], {ARG['ws']}
    v_lshrrev_b32 v1, 6, v0
    v_and_b32 {v(vln)}, 63, v0
    v_readfirstlane_b32 {s(s_w)}, v1
    s_lshr_b32 {s(s_i)}, s2, 3
    s_and_b32 {s(s_t)}, s2, 1
    s_lshl_b32 {s(s_t)}, {s(s_t)}, 3
    s_and_b32 {s(s_rb)}, {s(s_i)}, 7
    s_add_u32 {s(s_rb)}, {s(s_rb)}, {s(s_t)}
    s_bfe_u32 {s(s_t)}, s2, 0x20001
    s_lshl_b32 {s(s_t)}, {s(s_t)}, 2
    s_lshr_b32 {s(s_cbl)}, {s(s_i)}, 3
    s_add_u32 {s(s_cb)}, {s(s_cbl)}, {s(s_t)}
    s_and_b32 {s(s_tg)}, {s(s_w)}, 3
    s_lshr_b32 {s(s_cg)}, {s(s_w)}, 2''')
    code_prefetch(A, code_start, code_end, 8, s_w, s_i, s_t2, vt0, vpf)
    A(f'''v_lshrrev_b32 {v(vt0)}, 2, {v(vln)}
    s_lshl_b32 {s(s_t)}, {s(s_rb)}, 3
    s_add_u32 {s(s_t)}, {s(s_t)}, {s(s_w)}
    s_lshl_b32 {s(s_t)}, {s(s_t)}, 4
    v_add_u32 {v(vt1)}, {s(s_t)}, {v(vt0)}
    v_mul_u32_u24 {v(vt1)}, 1152, {v(vt1)}
    v_lshrrev_b32 {v(vt0)}, 4, {v(vln)}
    v_and_b32 {v(vt0)}, 2, {v(vt0)}
    v_xor_b32 {v(vt0)}, {v(vt0)}, {v(vln)}
    v_and_b32 {v(vt0)}, 3, {v(vt0)}
    v_lshl_add_u32 {v(vXs)}, {v(vt0)}, 4, {v(vt1)}
    s_movk_i32 {s(s_pw)}, 3456
    s_cmp_ge_u32 {s(s_cb)}, 12
    s_cselect_b32 {s(s_pw)}, 1152, {s(s_pw)}
    s_cselect_b32 {s(s_t)}, {s(s_cbl)}, {s(s_cb)}
    s_mul_i32 {s(s_ob)}, {s(s_t)}, 288
    s_lshl_b32 {s(s_stepw)}, {s(s_pw)}, 5
    s_lshl_b32 {s(s_mx)}, {s(s_w)}, 10
    s_add_u32 {s(s_mw)}, {s(s_mx)}, 8192''')
    def wsrc(dst, qreg):
        A(f'''v_mul_u32_u24 {v(vt1)}, 3641, {v(qreg)}
        v_lshrrev_b32 {v(vt1)}, 16, {v(vt1)}
        v_mul_u32_u24 {v(vt2)}, 18, {v(vt1)}
        v_sub_u32 {v(vt2)}, {v(qreg)}, {v(vt2)}
        v_lshlrev_b32 {v(vt2)}, 4, {v(vt2)}
        v_add_u32 {v(vt2)}, {s(s_ob)}, {v(vt2)}
        v_lshrrev_b32 {v(dst)}, 1, {v(vt1)}
        v_xor_b32 {v(dst)}, {v(dst)}, {v(vt1)}
        v_and_b32 {v(dst)}, 4, {v(dst)}
        v_mul_u32_u24 {v(dst)}, 3, {v(dst)}
        v_xor_b32 {v(vt1)}, {v(dst)}, {v(vt1)}
        v_mad_u32_u24 {v(dst)}, {v(vt1)}, {s(s_pw)}, {v(vt2)}''')
    wsrc(vWs, 0)
    A(f'v_add_u32 {v(vt0)}, 512, {v(vln)}')
    wsrc(vW9, vt0)
    A(f'''s_and_b32 {s(s_kd)}, {s(s_i)}, 7
    s_lshl_b32 {s(s_kd)}, {s(s_kd)}, 1
    s_mul_i32 {s(s_t)}, {s(s_cbl)}, 5
    s_add_u32 {s(s_kd)}, {s(s_kd)}, {s(s_t)}
    s_sub_u32 {s(s_t)}, {s(s_kd)}, 18
    s_cselect_b32 {s(s_kd)}, {s(s_kd)}, {s(s_t)}
    s_mov_b32 {s(s_kc)}, {s(s_kd)}
    s_lshl_b32 {s(s_ox)}, {s(s_kd)}, 6
    s_mul_i32 {s(s_ow)}, {s(s_kd)}, {s(s_stepw)}
    s_waitcnt lgkmcnt(0)
    s_cmp_ge_u32 {s(s_cb)}, 12
    s_cselect_b32 s8, s16, s6
    s_cselect_b32 s9, s17, s7
    s_mov_b32 s10, {D*3*D*2}
    s_cselect_b32 s10, {D*D*2}, s10
    s_mov_b32 s11, 0x20000
    s_mov_b32 s6, {S*D*2}
    s_mov_b32 s7, 0x20000
    s_mov_b32 s16, s18
    s_mov_b32 s17, s19
    s_mov_b32 s18, {D*D*2}
    s_mov_b32 s19, 0x20000
    s_mov_b32 s14, {WS_BYTES}
    s_mov_b32 s15, 0x20000
    s_nop 0''')
    def dma(step):
        base = (step % NSLOT)*SLOT; sk = A.label('n9')
        return [f's_add_u32 m0, {s(s_mx)}, {base}',
                f's_cmp_lg_u32 {s(s_w)}, {step % 8}',
                f'buffer_load_dwordx4 {v(vXs)}, {s(sX,4)}, {s(s_ox)} offen lds',
                f's_cbranch_scc1 {sk}\ns_mov_b32 m0, {base+16384}\ns_nop 0\nbuffer_load_dwordx4 {v(vW9)}, {s(sW,4)}, {s(s_ow)} offen lds\n{sk}:',
                f's_add_u32 m0, {s(s_mw)}, {base}',
                f's_add_u32 {s(s_ox)}, {s(s_ox)}, 64',
                f'buffer_load_dwordx4 {v(vWs)}, {s(sW,4)}, {s(s_ow)} offen lds',
                f's_add_u32 {s(s_ow)}, {s(s_ow)}, {s(s_stepw)}',
                f's_cmp_eq_u32 {s(s_ox)}, {18*64}\ns_cselect_b32 {s(s_ox)}, 0, {s(s_ox)}\ns_cselect_b32 {s(s_ow)}, 0, {s(s_ow)}']
    A(f'''s_mul_i32 {s(s_t)}, {s(s_rb)}, 12
    s_add_u32 {s(s_t)}, {s(s_t)}, {s(s_cb)}
    s_mul_i32 {s(s_t)}, {s(s_t)}, 3
    s_add_u32 {s(s_t)}, {s(s_t)}, {s(s_w)}
    s_mul_i32 {s(s_t2)}, {s(s_t)}, 1152
    v_lshlrev_b32 {v(vt0)}, 4, {v(vln)}''')
    for st in range(2):
        for ln in dma(st): A(ln)
    A(f'''v_cmp_gt_u32 vcc, 8, {v(vln)}
    v_mov_b32 {v(vt2)}, 0x7fff0000
    s_mov_b32 {s(s_br)}, {s(s_t2)}
    v_mov_b32 {v(17)}, {v(vt0)}
    v_cndmask_b32 {v(18)}, {v(vt2)}, {v(vt0)}, vcc''')
    A(f'''s_mov_b32 {s(s_t2+2)}, {s(s_t)}
    v_and_b32 {v(vt0)}, 15, {v(vln)}
    s_lshl_b32 {s(s_t)}, {s(s_tg)}, 5
    v_add_u32 {v(vt1)}, {s(s_t)}, {v(vt0)}
    v_lshlrev_b32 {v(vt1)}, 6, {v(vt1)}
    v_lshrrev_b32 {v(vt0)}, 2, {v(vln)}
    v_and_b32 {v(vt0)}, 2, {v(vt0)}
    v_lshrrev_b32 {v(vt2)}, 4, {v(vln)}
    v_xor_b32 {v(vt0)}, {v(vt0)}, {v(vt2)}
    v_lshl_add_u32 {v(vXa)}, {v(vt0)}, 4, {v(vt1)}
    v_lshrrev_b32 {v(vt0)}, 5, {v(vln)}
    v_lshlrev_b32 {v(vt0)}, 4, {v(vt0)}
    v_bfe_u32 {v(vt1)}, {v(vln)}, 2, 3
    v_add_u32 {v(vt0)}, {v(vt0)}, {v(vt1)}
    v_mul_u32_u24 {v(vt0)}, 288, {v(vt0)}
    v_and_b32 {v(vt1)}, 3, {v(vln)}
    v_lshl_add_u32 {v(vt0)}, {v(vt1)}, 3, {v(vt0)}
    s_mul_i32 {s(s_t)}, {s(s_cg)}, 160
    s_add_u32 {s(s_t)}, {s(s_t)}, 8192
    v_add_u32 {v(vWa)}, {s(s_t)}, {v(vt0)}
    s_lshl_b32 {s(s_t)}, {s(s_tg)}, 5
    v_add_u32 {v(vCa)}, {s(s_t)}, {v(vWa)}''')
    for b in (vXa, vWa, vCa):
        A(f'v_add_u32 {v(b+1)}, {3*SLOT}, {v(b)}')
        A(f'v_add_u32 {v(b+2)}, {6*SLOT}, {v(b)}')
    for i in range(4): A(f'v_mov_b32 {v(vones+i)}, 0x3f803f80')
    A(f'''s_mov_b32 {s(s_m1)}, 0x22222222
    s_mov_b32 {s(s_m1+1)}, 0x22222222
    s_mov_b32 {s(s_m2)}, 0x44444444
    s_mov_b32 {s(s_m2+1)}, 0x44444444
    s_mov_b32 {s(s_m3)}, 0x88888888
    s_mov_b32 {s(s_m3+1)}, 0x88888888
    s_mov_b32 {s(s_md)}, 0x00F0000F
    s_mov_b32 {s(s_md+1)}, 0xF0000F00''')

    A(f'''v_lshrrev_b32 {v(vPx)}, 4, {v(vln)}
    v_lshlrev_b32 {v(vPx)}, 15, {v(vPx)}
    v_and_b32 {v(vt0)}, 15, {v(vln)}
    v_lshl_add_u32 {v(vPx)}, {v(vt0)}, 4, {v(vPx)}
    s_lshl_b32 {s(s_tx)}, {s(s_rb)}, 2
    s_add_u32 {s(s_tx)}, {s(s_tx)}, {s(s_tg)}
    s_lshl_b32 {s(s_tx)}, {s(s_tx)}, 1
    s_add_u32 {s(s_tx)}, {s(s_tx)}, {s(s_cg)}
    s_lshl_b32 {s(s_tx)}, {s(s_tx)}, 8
    s_add_u32 {s(s_tx)}, {s(s_tx)}, {TX}''')
    def xcopy(step, cg):
        sk = A.label('nx')
        return [f's_and_b32 {s(s_t)}, {s(s_kc)}, 15\ns_cmp_lg_u32 {s(s_t)}, {s(s_cb)}\ns_cbranch_scc1 {sk}\ns_lshl_b32 {s(s_t)}, {s(s_kc)}, 17\n'
                f's_add_u32 {s(s_t)}, {s(s_t)}, {s(s_tx)}\nbuffer_store_dwordx4 {v(FR[step & 1]+4*cg,4)}, {v(vPx)}, {s(sWS,4)}, {s(s_t)} offen {STF}\n{sk}:',
                f's_add_u32 {s(s_kc)}, {s(s_kc)}, 1\ns_cmp_eq_u32 {s(s_kc)}, 18\ns_cselect_b32 {s(s_kc)}, 0, {s(s_kc)}']
    def reads(step, nm):
        f = FR[step & 1]; sl = step % NSLOT; th = sl//3; o = (sl % 3)*SLOT
        r = [f'ds_read_b128 {v(f,4)}, {v(vXa+th)} offset:{o}', f'ds_read_b128 {v(f+4,4)}, {v(vXa+th)} offset:{o+1024}']
        for u in range(nm):
            r.append(f'ds_read_b64_tr_b16 {v(f+8+4*u,2)}, {v(vWa+th)} offset:{o+32*u}')
            r.append(f'ds_read_b64_tr_b16 {v(f+10+4*u,2)}, {v(vWa+th)} offset:{o+32*u+2304}')
        r.append(f'ds_read_b64_tr_b16 {v(f+28,2)}, {v(vCa+th)} offset:{o}')
        r.append(f'ds_read_b64_tr_b16 {v(f+30,2)}, {v(vCa+th)} offset:{o+2304}')
        return r
    def mf(d, a, b, first):
        return f'v_mfma_f32_16x16x32_bf16 {v(d,4)}, {v(a,4)}, {v(b,4)}, ' + ('0' if first else v(d,4))
    def mfmas(step, cg, orient):
        f = FR[step & 1]; nm = 5 if cg == 0 else 4; fi = step == 0
        r = []
        for u in range(nm):
            for nt in range(2):
                wfr, xfr = f+8+4*u, f+4*nt
                r.append(mf(ACC+8*u+4*nt, wfr, xfr, fi) if orient == 1 else mf(ACC+8*u+4*nt, xfr, wfr, fi))
        r.append(mf(ACS, vones, f+28, fi))
        if cg == 0:
            r.append(mf(AC4, vones, f+24, fi))
        else:
            for nt in range(2):
                r.append(mf(AG[nt], f+4*nt, f+4*nt, fi))
                r.append(mf(AS[nt], vones, f+4*nt, fi))
        return r
    nz = A.label('nz')
    A(f'''s_cmp_ge_u32 s2, {FLAG_BYTES//4096}
    s_cbranch_scc1 {nz}
    v_mov_b32 {v(E)}, 0
    v_mov_b32 {v(E+1)}, 0
    v_lshlrev_b32 {v(vt0)}, 3, v0
    s_lshl_b32 {s(s_t)}, s2, 12
    s_add_u32 {s(s_t)}, {s(s_t)}, {FLAGS}
    buffer_store_dwordx2 {v(E,2)}, {v(vt0)}, {s(sWS,4)}, {s(s_t)} offen
    {nz}:''')
    lab = {(cg, o): A.label(f'k1_{cg}{o}') for cg in (0, 1) for o in (1, 2)}
    labV = A.label('isv')
    A(f'''s_lshr_b32 {s(s_t)}, {s(s_cb)}, 2
    s_cmp_eq_u32 {s(s_t)}, 2
    s_cbranch_scc1 {labV}
    s_cmp_eq_u32 {s(s_cg)}, 0
    s_cbranch_scc1 {lab[(0,1)]}
    s_branch {lab[(1,1)]}
    {labV}:
    s_cmp_eq_u32 {s(s_cg)}, 0
    s_cbranch_scc1 {lab[(0,2)]}
    s_branch {lab[(1,2)]}''')
    bar_job = A.label('barjob')
    for cg in (0, 1):
        for orient in (1, 2):
            nm = 5 if cg == 0 else 4
            A('.p2align 6')
            A(f'{lab[(cg,orient)]}:')
            stamp(A, 1)
            A(f's_waitcnt vmcnt(2)\ns_barrier')
            stamp(A, 2)
            issued = 2
            for ln in reads(0, nm): A(ln)
            for ln in dma(2): A(ln)
            issued = 3; landed = 0
            A('s_waitcnt lgkmcnt(0)')
            for st in range(18):
                fill = []
                if st+1 < 18:
                    if landed < st+1:
                        landed = min(st+1 + (1 if st >= 2 else 0), 17)
                        A(f's_waitcnt vmcnt({2*(issued-1-landed)})\ns_barrier')
                    fill = reads(st+1, nm)
                    for _ in range(2):
                        if issued < min(18, st+1+LEAD):
                            fill = fill + dma(issued); issued += 1
                    if st == 16:
                        fill = fill + [f'buffer_load_dwordx4 {v(vbar,4)}, {v(17)}, {s(sW2,4)}, {s(s_br)} offen',
                                       f'buffer_load_dwordx4 {v(vbar+4,4)}, {v(18)}, {s(sW2,4)}, {s(s_br)} offen offset:1024',
                                       f's_mul_i32 {s(s_t2)}, {s(s_i)}, {162*128}', f'v_lshlrev_b32 {v(vPw)}, 4, v0'] + \
                               [f'buffer_load_dwordx4 {v(212,4)}, {v(vPw)}, {s(sW2,4)}, {s(s_t2)} offen\ns_add_u32 {s(s_t2)}, {s(s_t2)}, 8192' for _ in range(3)]
                fill = xcopy(st, cg) + fill
                if st == 9: stamp(A, 3)
                for ln in interleave(mfmas(st, cg, orient), fill): A(ln)
                if st+1 < 18: A('s_waitcnt lgkmcnt(0)')
            stamp(A, 4)
            A(f'''v_and_b32 {v(vt0)}, 15, {v(vln)}
            s_mul_i32 {s(s_t)}, {s(s_cg)}, 5
            s_add_u32 {s(s_t)}, {s(s_t)}, {s(s_tg)}
            s_lshl_b32 {s(s_t)}, {s(s_t)}, 4
            v_add_u32 {v(vt1)}, {s(s_t)}, {v(vt0)}
            v_lshlrev_b32 {v(vt1)}, 2, {v(vt1)}
            v_lshlrev_b32 {v(vt2)}, 2, {v(vt0)}
            v_add_u32 {v(vt1)}, {L_CS}, {v(vt1)}
            v_add_u32 {v(vt2)}, {L_CS+256}, {v(vt2)}
            s_lshl_b32 {s(s_t)}, {s(s_tg)}, 5
            v_add_u32 {v(E)}, {s(s_t)}, {v(vt0)}
            v_lshlrev_b32 {v(E)}, 2, {v(E)}
            v_add_u32 {v(E+1)}, {L_STM}, {v(E)}
            s_nop 1
            ds_write_b32 {v(vt1)}, {v(ACS)}''')
            if cg == 0:
                A(f'ds_write_b32 {v(vt2)}, {v(AC4)}')
            else:
                notq, noth, stdone = A.label('notq'), A.label('noth'), A.label('std')
                for nt in range(2):
                    g, sm = AG[nt], AS[nt]
                    A(f'''v_cndmask_b32 {v(g)}, {v(g)}, {v(g+1)}, {s(s_m1,2)}
                    v_cndmask_b32 {v(g)}, {v(g)}, {v(g+2)}, {s(s_m2,2)}
                    v_cndmask_b32 {v(g)}, {v(g)}, {v(g+3)}, {s(s_m3,2)}
                    v_mul_f32 {v(sm)}, {f32(1.0/D)}, {v(sm)}
                    v_mul_f32 {v(g)}, {f32(1.0/D)}, {v(g)}
                    v_fma_f32 {v(g)}, -{v(sm)}, {v(sm)}, {v(g)}
                    v_max_f32 {v(g)}, 0, {v(g)}
                    v_add_f32 {v(g+1)}, {f32(1e-5)}, {v(g)}
                    v_rsq_f32 {v(g+1)}, {v(g+1)}''')
                if orient == 1:
                    A(f's_cmp_ge_u32 {s(s_cb)}, 4\ns_cbranch_scc1 {notq}')
                    for nt in range(2): A(f'v_mul_f32 {v(AG[nt]+1)}, {f32(QS)}, {v(AG[nt]+1)}')
                    A(f'{notq}:\ns_cmp_lt_u32 {s(s_cb)}, 12\ns_cbranch_scc1 {noth}')
                    for nt in range(2):
                        g = AG[nt]
                        A(f'''v_mul_f32 {v(g+2)}, {v(g+1)}, {v(g+1)}
                        v_mov_b32 {v(g+3)}, {f32(1e-5)}
                        v_fmac_f32 {v(g+3)}, {v(g+2)}, {v(g)}
                        v_rsq_f32 {v(g+3)}, {v(g+3)}
                        s_nop 0
                        v_mul_f32 {v(g+1)}, {v(g+1)}, {v(g+3)}''')
                    A(f'{noth}:')
                A(f's_nop 0\ns_mov_b64 exec, {s(s_md,2)}')
                for nt in range(2):
                    A(f'ds_write_b32 {v(E+1)}, {v(AS[nt])} offset:{64*nt}')
                    A(f'ds_write_b32 {v(E+1)}, {v(AG[nt]+1)} offset:{512+64*nt}')
                if orient == 1:
                    A(f'''s_cmp_lg_u32 {s(s_cb)}, 4
                    s_cbranch_scc1 {stdone}
                    s_lshl_b32 {s(s_t)}, {s(s_rb)}, 9
                    s_add_u32 {s(s_t)}, {s(s_t)}, {ST}
                    s_add_u32 {s(s_t2)}, {s(s_t)}, 8192''')
                    for nt in range(2):
                        A(f'buffer_store_dword {v(AS[nt])}, {v(E)}, {s(sWS,4)}, {s(s_t)} offen offset:{64*nt}')
                        A(f'buffer_store_dword {v(AG[nt]+1)}, {v(E)}, {s(sWS,4)}, {s(s_t2)} offen offset:{64*nt}')
                    A(f'{stdone}:')
                A('s_mov_b64 exec, -1')
            A('s_waitcnt lgkmcnt(0)\ns_barrier')
            stamp(A, 5)
            u0 = 5*cg
            if orient == 1:
                CS = E+8; MEAN = E+2; R = E+4; P = E+32; TMP = list(range(E+40, E+48)); CC = E+48
                A(f'''v_lshrrev_b32 {v(vt0)}, 4, {v(vln)}
                v_lshlrev_b32 {v(vt0)}, 4, {v(vt0)}
                v_add_u32 {v(vt0)}, {L_CS+64*u0}, {v(vt0)}''')
                for nt in range(2):
                    A(f'ds_read_b32 {v(MEAN+nt)}, {v(E+1)} offset:{64*nt}')
                    A(f'ds_read_b32 {v(R+nt)}, {v(E+1)} offset:{512+64*nt}')
                for u in range(nm): A(f'ds_read_b128 {v(CS+4*u,4)}, {v(vt0)} offset:{64*u}')
                A(f'''v_lshrrev_b32 {v(vt1)}, 5, {v(vln)}
                v_lshlrev_b32 {v(vt1)}, 15, {v(vt1)}
                v_and_b32 {v(vt2)}, 31, {v(vln)}
                v_lshl_add_u32 {v(vt1)}, {v(vt2)}, 4, {v(vt1)}
                s_lshr_b32 {s(s_t)}, {s(s_cb)}, 2
                s_min_u32 {s(s_t)}, {s(s_t)}, 2
                s_mul_i32 {s(s_t)}, {s(s_t)}, {TSZ}
                s_mul_i32 {s(s_t2)}, {s(s_cbl)}, {18*GP}
                s_add_u32 {s(s_t)}, {s(s_t)}, {s(s_t2)}
                s_lshl_b32 {s(s_t2)}, {s(s_rb)}, 2
                s_add_u32 {s(s_t2)}, {s(s_t2)}, {s(s_tg)}
                s_lshl_b32 {s(s_t2)}, {s(s_t2)}, 9
                s_add_u32 {s(s_t)}, {s(s_t)}, {s(s_t2)}
                s_add_u32 {s(s_t)}, {s(s_t)}, {TQ + 2*u0*GP}
                s_waitcnt lgkmcnt(0)''')
                for u in range(nm):
                    for nt in range(2):
                        for j in range(4):
                            a = ACC+8*u+4*nt+j
                            A(f'v_fma_f32 {v(a)}, -{v(MEAN+nt)}, {v(CS+4*u+j)}, {v(a)}')
                def pack_store(u):
                    p = P + 4*(u & 1)
                    for nt in range(2):
                        for jj in range(2):
                            a = ACC+8*u+4*nt+2*jj
                            A(f'v_cvt_pk_bf16_f32 {v(p+2*nt+jj)}, {v(a)}, {v(a+1)}')
                    A(f'''s_nop 1
                    v_permlane16_swap_b32 {v(p)}, {v(p+2)}
                    v_permlane16_swap_b32 {v(p+1)}, {v(p+3)}
                    buffer_store_dwordx4 {v(p,4)}, {v(vt1)}, {s(sWS,4)}, {s(s_t)} offen {STF}
                    s_add_u32 {s(s_t)}, {s(s_t)}, {2*GP}''')
                ish = A.label('ish')
                A(f's_cmp_ge_u32 {s(s_cb)}, 12\ns_cbranch_scc1 {ish}')
                for u in range(nm):
                    for nt in range(2):
                        for j in range(4):
                            a = ACC+8*u+4*nt+j
                            A(f'v_mul_f32 {v(a)}, {v(R+nt)}, {v(a)}')
                    pack_store(u)
                A(f's_branch {bar_job}')
                A(f'{ish}:')
                for nt in range(2):
                    c = CC+4*nt
                    A(f'''v_mul_f32 {v(c)}, {f32(C1)}, {v(R+nt)}
                    v_mul_f32 {v(c+1)}, {v(R+nt)}, {v(R+nt)}
                    v_mul_f32 {v(c+1)}, {v(c+1)}, {v(R+nt)}
                    v_mul_f32 {v(c+1)}, {f32(C2)}, {v(c+1)}
                    v_rcp_f32 {v(c+2)}, {v(R+nt)}''')
                for u in range(nm):
                    for nt in range(2):
                        c = CC+4*nt
                        gelu_block(A, [ACC+8*u+4*nt+j for j in range(4)], TMP[:4], c, c+1, c+2)
                    pack_store(u)
                A(f's_branch {done}')
            else:
                MEAN = E+8; R = E+16; CS = E+24; P = E+32; AD = E+40
                A(f'''v_lshrrev_b32 {v(vt0)}, 4, {v(vln)}
                v_lshlrev_b32 {v(vt0)}, 4, {v(vt0)}
                s_lshl_b32 {s(s_t)}, {s(s_tg)}, 7
                s_add_u32 {s(s_t)}, {s(s_t)}, {L_STM}
                v_add_u32 {v(vt0)}, {s(s_t)}, {v(vt0)}
                v_and_b32 {v(vt1)}, 15, {v(vln)}
                v_lshlrev_b32 {v(vt2)}, 2, {v(vt1)}
                v_add_u32 {v(vt2)}, {L_CS+64*u0}, {v(vt2)}''')
                for nt in range(2):
                    A(f'ds_read_b128 {v(MEAN+4*nt,4)}, {v(vt0)} offset:{64*nt}')
                    A(f'ds_read_b128 {v(R+4*nt,4)}, {v(vt0)} offset:{512+64*nt}')
                for u in range(nm): A(f'ds_read_b32 {v(CS+u)}, {v(vt2)} offset:{64*u}')
                A(f'''v_lshrrev_b32 {v(vt0)}, 4, {v(vln)}
                v_mul_u32_u24 {v(vt0)}, 320, {v(vt0)}
                s_lshl_b32 {s(s_t)}, {s(s_rb)}, 2
                s_add_u32 {s(s_t)}, {s(s_t)}, {s(s_tg)}
                s_mul_i32 {s(s_t)}, {s(s_t)}, 1280
                s_mul_i32 {s(s_t2)}, {s(s_cbl)}, {8*64*1280}
                s_add_u32 {s(s_t)}, {s(s_t)}, {s(s_t2)}
                s_add_u32 {s(s_t)}, {s(s_t)}, {VB}
                s_mov_b32 {s(s_t2)}, {64*1280 - 18*16}''')
                for u in range(nm):
                    A(f'''v_add_u32 {v(AD+u)}, {16*(u0+u)}, {v(vt1)}
                    v_mul_u32_u24 {v(vt2)}, 3641, {v(AD+u)}
                    v_lshrrev_b32 {v(vt2)}, 16, {v(vt2)}
                    v_lshl_add_u32 {v(AD+u)}, {v(AD+u)}, 4, {v(vt0)}
                    v_mad_u32_u24 {v(AD+u)}, {v(vt2)}, {s(s_t2)}, {v(AD+u)}''')
                if cg == 1:
                    A(f'''v_bfe_u32 {v(vt0)}, {v(vln)}, 2, 3
                    v_mul_u32_u24 {v(vt0)}, {64*1280}, {v(vt0)}
                    v_and_b32 {v(vt2)}, 3, {v(vln)}
                    v_mul_u32_u24 {v(vt2)}, 320, {v(vt2)}
                    v_add_u32 {v(vt0)}, {v(vt0)}, {v(vt2)}
                    v_lshrrev_b32 {v(vt2)}, 5, {v(vln)}
                    v_lshl_add_u32 {v(vt0)}, {v(vt2)}, 4, {v(vt0)}
                    s_mov_b32 exec_lo, 0
                    v_mov_b32 {v(vones)}, 0
                    v_mov_b32 {v(vones+1)}, 0
                    v_mov_b32 {v(vones+2)}, 0
                    v_mov_b32 {v(vones+3)}, 0
                    s_mov_b32 exec_lo, -1
                    buffer_store_dwordx4 {v(vones,4)}, {v(vt0)}, {s(sWS,4)}, {s(s_t)} offen offset:288 {STF}''')
                A('s_waitcnt lgkmcnt(0)')
                for u in range(nm):
                    p = P + 4*(u & 1)
                    for nt in range(2):
                        for j in range(4):
                            a = ACC+8*u+4*nt+j
                            A(f'v_fma_f32 {v(a)}, -{v(MEAN+4*nt+j)}, {v(CS+u)}, {v(a)}')
                            A(f'v_mul_f32 {v(a)}, {v(R+4*nt+j)}, {v(a)}')
                        for jj in range(2):
                            a = ACC+8*u+4*nt+2*jj
                            A(f'v_cvt_pk_bf16_f32 {v(p+2*nt+jj)}, {v(a)}, {v(a+1)}')
                    A(f'''s_nop 1
                    v_permlane32_swap_b32 {v(p)}, {v(p+2)}
                    v_permlane32_swap_b32 {v(p+1)}, {v(p+3)}
                    buffer_store_dwordx4 {v(p,4)}, {v(AD+u)}, {s(sWS,4)}, {s(s_t)} offen {STF}''')
                A(f's_branch {bar_job}')
    t = E; acc = E+1
    A(f'''{bar_job}:
    s_cmp_ge_u32 {s(s_w)}, 3
    s_cbranch_scc1 {done}
    s_waitcnt vmcnt(0)
    v_mov_b32 {v(acc)}, 0''')
    for i in range(4): A(f'v_mov_b32 {v(t+8+i)}, {v(vbar+4+i)}')
    for i in range(8):
        A(f'''v_lshlrev_b32 {v(t)}, 16, {v(vbar+i)}
        v_and_b32 {v(vbar+i)}, 0xffff0000, {v(vbar+i)}
        v_add_f32 {v(acc)}, {v(acc)}, {v(t)}
        v_add_f32 {v(acc)}, {v(acc)}, {v(vbar+i)}''')
    for d in ('quad_perm:[1,0,3,2]', 'quad_perm:[2,3,0,1]', 'row_half_mirror', 'row_mirror'):
        A(f's_nop 1\nv_add_f32_dpp {v(acc)}, {v(acc)}, {v(acc)} {d} row_mask:0xf bank_mask:0xf')
    for sw in ('v_permlane16_swap_b32', 'v_permlane32_swap_b32'):
        A(f'''v_mov_b32 {v(t)}, {v(acc)}
        s_nop 1
        {sw} {v(acc)}, {v(t)}
        v_add_f32 {v(acc)}, {v(acc)}, {v(t)}''')
    A(f'''v_mul_f32 {v(acc)}, {f32(1.0/D)}, {v(acc)}
    v_cvt_pk_bf16_f32 {v(t)}, {v(acc)}, {v(acc)}
    v_and_b32 {v(t+2)}, 0xffff0000, {v(t)}
    v_sub_f32 {v(t+2)}, {v(acc)}, {v(t+2)}
    v_cvt_pk_bf16_f32 {v(t+4)}, {v(acc)}, {v(t+2)}
    s_lshl_b32 {s(s_t)}, {s(s_t2+2)}, 5
    s_add_u32 {s(s_t)}, {s(s_t)}, {XIMG}
    v_mov_b32 {v(t+5)}, 0
    v_mov_b32 {v(t+6)}, 0
    v_mov_b32 {v(t+7)}, 0
    v_mul_u32_u24 {v(t+3)}, 18432, {v(vln)}
    s_mov_b64 exec, 0xff
    buffer_store_dwordx4 {v(t+8,4)}, {v(t+3)}, {s(sWS,4)}, {s(s_t)} offen
    buffer_store_dwordx4 {v(t+4,4)}, {v(t+3)}, {s(sWS,4)}, {s(s_t)} offen offset:16
    {done}:''')
    stamp(A, 6)
    if STAMPS: A('s_waitcnt vmcnt(0)')
    stamp(A, 7)
    stamp_flush(A, STAMP, 2)
    A(f'{done2}:\ns_endpgm')
    return NV
```

```python
from asmlib import *
from layout import *
K3_LDS = 576*128
K3_NV = 256 if DBGT else 232
K3_GRID = 240

def gen_k3(A, name, npart=10, li=2):
    sWO, sWS, sOUT = 4, 12, 8
    s_w, s_n, s_tb, s_sg, s_t, s_t2, s_src, s_m = range(20, 28)
    vln, vDs, vDr, vB, vt0, vt1, vt2, vO = 1, 2, 3, 4, 5, 6, 7, 8
    vAa = 12; E = [16, 20]; ACC = 24; AF = [40, 56]; OB = 72; PB = 144
    kernel_begin(A, name)
    done = A.label('k3done')
    stamp(A, 0)
    A(f'''s_and_b32 {s(s_n)}, s2, 7
    s_mul_i32 {s(s_n)}, {s(s_n)}, 30
    s_lshr_b32 {s(s_t)}, s2, 3
    s_add_u32 {s(s_n)}, {s(s_n)}, {s(s_t)}
    s_cmp_ge_u32 s2, {K3_GRID}
    s_cbranch_scc1 {done}
    s_cmp_ge_u32 {s(s_n)}, 234
    s_cbranch_scc1 {done}
    s_load_dwordx2 s[4:5], s[0:1], {ARG['wo']}
    s_load_dwordx2 s[8:9], s[0:1], {ARG['out']}
    s_load_dwordx2 s[12:13], s[0:1], {ARG['ws']}
    v_lshrrev_b32 {v(vt0)}, 6, v0
    v_and_b32 {v(vln)}, 63, v0
    v_readfirstlane_b32 {s(s_w)}, {v(vt0)}
    s_mul_i32 {s(s_tb)}, {s(s_n)}, 7282
    s_lshr_b32 {s(s_tb)}, {s(s_tb)}, 16
    s_mul_i32 {s(s_t)}, {s(s_tb)}, 9
    s_sub_u32 {s(s_sg)}, {s(s_n)}, {s(s_t)}
    s_mov_b32 s6, {D*D*2}
    s_mov_b32 s7, 0x20000
    s_mov_b32 s10, {S*D*2}
    s_mov_b32 s11, 0x20000
    s_mov_b32 s14, {WS_BYTES}
    s_mov_b32 s15, 0x20000
    s_mul_i32 {s(s_t)}, {s(s_tb)}, 5
    s_add_u32 {s(s_t)}, {s(s_t)}, {s(s_w)}
    s_lshl_b32 {s(s_t)}, {s(s_t)}, 4
    v_and_b32 {v(vt0)}, 15, {v(vln)}
    v_add_u32 {v(vO)}, {s(s_t)}, {v(vt0)}
    v_lshrrev_b32 {v(vt1)}, 4, {v(vln)}
    v_lshlrev_b32 {v(vB)}, 15, {v(vt1)}
    v_lshl_add_u32 {v(vB)}, {v(vO)}, 4, {v(vB)}
    v_lshrrev_b32 {v(vt0)}, 3, {v(vln)}
    v_and_b32 {v(vt1)}, 2, {v(vt0)}
    s_and_b32 {s(s_t)}, {s(s_w)}, 1
    s_lshl_b32 {s(s_t)}, {s(s_t)}, 2
    v_or_b32 {v(vt1)}, {s(s_t)}, {v(vt1)}
    v_xor_b32 {v(vt1)}, {v(vt1)}, {v(vln)}
    v_and_b32 {v(vt1)}, 7, {v(vt1)}
    v_lshlrev_b32 {v(vt1)}, 4, {v(vt1)}
    v_and_b32 {v(vt2)}, 4, {v(vt0)}
    v_add_u32 {v(vt2)}, {v(vt2)}, {v(vt0)}
    v_mul_u32_u24 {v(vt2)}, 1152, {v(vt2)}
    v_add_u32 {v(vDs)}, {v(vt2)}, {v(vt1)}
    v_lshrrev_b32 {v(vt2)}, 1, {v(vt0)}
    v_lshl_add_u32 {v(vt2)}, {v(vt2)}, 4, {v(vt0)}
    v_mul_u32_u24 {v(vt2)}, 1152, {v(vt2)}
    v_add_u32 {v(vDr)}, {v(vt2)}, {v(vt1)}
    s_lshr_b32 {s(s_t)}, {s(s_w)}, 1
    s_mul_i32 {s(s_t)}, {s(s_t)}, {18*1152}
    s_and_b32 {s(s_t2)}, {s(s_w)}, 1
    s_mul_i32 {s(s_t2)}, {s(s_t2)}, {4*1152}
    s_add_u32 {s(s_src)}, {s(s_t)}, {s(s_t2)}
    s_lshl_b32 {s(s_t)}, {s(s_sg)}, 7
    s_add_u32 {s(s_src)}, {s(s_src)}, {s(s_t)}
    s_lshl_b32 {s(s_m)}, {s(s_w)}, 10
    s_waitcnt lgkmcnt(0)''')
    nod = A.label('k3nod')
    A(f's_cmp_eq_u32 {s(s_w)}, 4\ns_cbranch_scc1 {nod}')
    for st in range(16):
        A(f'''s_add_u32 m0, {s(s_m)}, {4096*st}
        s_nop 0
        buffer_load_dwordx4 {v(vDs)}, {s(sWO,4)}, {s(s_src)} offen lds
        s_add_u32 {s(s_src)}, {s(s_src)}, {36*1152}''')
    A(f'''s_mul_i32 {s(s_src)}, {s(s_w)}, {72*1152}
    s_add_u32 {s(s_src)}, {s(s_src)}, {s(s_t)}
    s_add_u32 {s(s_src)}, {s(s_src)}, {16*1152}''')
    for st in range(16, 18):
        A(f'''s_add_u32 m0, {s(s_m)}, {4096*st}
        s_nop 0
        buffer_load_dwordx4 {v(vDr)}, {s(sWO,4)}, {s(s_src)} offen lds
        s_add_u32 {s(s_src)}, {s(s_src)}, {4*72*1152}''')
    A(f'''{nod}:
    v_lshlrev_b32 {v(vt0)}, 2, {v(vO)}
    s_mov_b32 {s(s_t)}, {MEAN}
    buffer_load_dword {v(9)}, {v(vt0)}, {s(sWS,4)}, {s(s_t)} offen
    s_mov_b32 {s(s_t)}, {TO}''')
    for st in range(18):
        A(f'buffer_load_dwordx4 {v(OB+4*st,4)}, {v(vB)}, {s(sWS,4)}, {s(s_t)} offen\ns_add_u32 {s(s_t)}, {s(s_t)}, {4*GP}')
    A(f's_lshl_b32 {s(s_t)}, {s(s_sg)}, 18\ns_add_u32 {s(s_t)}, {s(s_t)}, {PART}')
    for j in range(npart):
        if j >= 8: A(f's_lshl_b32 {s(s_t)}, {s(s_sg)}, 18\ns_add_u32 {s(s_t)}, {s(s_t)}, {TY if j == 8 else TX}')
        for hs in range(2):
            A(f'buffer_load_dwordx4 {v(PB+8*j+4*hs,4)}, {v(vB)}, {s(sWS,4)}, {s(s_t)} offen')
            A(f's_add_u32 {s(s_t)}, {s(s_t)}, {4*GP if hs == 0 else TSZ-4*GP}')
    stamp(A, 1)
    A(f'''v_lshrrev_b32 {v(vt0)}, 4, {v(vln)}
    v_bfe_u32 {v(vt1)}, {v(vln)}, 2, 2
    v_lshl_add_u32 {v(vt2)}, {v(vt0)}, 3, {v(vt1)}
    v_lshlrev_b32 {v(vt2)}, 7, {v(vt2)}
    v_and_b32 {v(vDs)}, 3, {v(vln)}
    v_lshl_add_u32 {v(vt2)}, {v(vDs)}, 3, {v(vt2)}
    v_lshrrev_b32 {v(vt1)}, 1, {v(vt1)}
    v_and_b32 {v(vDs)}, 1, {v(vt0)}
    v_lshl_or_b32 {v(vt1)}, {v(vDs)}, 1, {v(vt1)}''')
    for u in range(4):
        A(f'v_xor_b32 {v(vDs)}, {u}, {v(vt1)}\nv_lshl_add_u32 {v(vAa+u)}, {v(vDs)}, 5, {v(vt2)}')
    A(f'''v_and_b32 {v(vt1)}, 15, {v(vln)}
    v_lshlrev_b32 {v(vt0)}, 3, {v(vt0)}
    v_sub_u32 {v(vt0)}, {v(vt1)}, {v(vt0)}
    v_and_b32 {v(vt1)}, 1, {v(vln)}
    v_lshlrev_b32 {v(vt1)}, 4, {v(vt1)}
    v_mov_b32 {v(vt2)}, 0x3f80
    v_lshlrev_b32 {v(vt1)}, {v(vt1)}, {v(vt2)}
    v_ashrrev_i32 {v(vt0)}, 1, {v(vt0)}''')
    for e in range(2):
        for d in range(4):
            A(f'v_cmp_eq_u32 vcc, {d - 8*e}, {v(vt0)}\ns_nop 1\nv_cndmask_b32 {v(E[e]+d)}, 0, {v(vt1)}, vcc')
    def rd(st):
        o = (st % 9)*4096; r = []
        for u in range(4):
            b = AF[st & 1]+4*u
            r += [f'ds_read_b64_tr_b16 {v(b,2)}, {v(vAa+u)} offset:{o}', f'ds_read_b64_tr_b16 {v(b+2,2)}, {v(vAa+u)} offset:{o+512}']
        return r
    np2 = 2*npart
    A(f's_waitcnt vmcnt({np2})\ns_barrier')
    stamp(A, 2)
    for ln in rd(0): A(ln)
    for st in range(18):
        nxt = []
        if st == 8: nxt += [f'v_add_u32 {v(vAa+u)}, {9*4096}, {v(vAa+u)}' for u in range(4)]
        if st < 17: nxt += rd(st+1)
        for ln in nxt: A(ln)
        A(f's_waitcnt lgkmcnt({8 if st < 17 else 0})')
        for u in range(4):
            A(f'v_mfma_f32_16x16x32_bf16 {v(ACC+4*u,4)}, {v(AF[st&1]+4*u,4)}, {v(OB+4*st,4)}, ' + ('0' if st == 0 else v(ACC+4*u,4)))
    stamp(A, 3)
    for j in range(npart):
        for hs in range(2):
            A(f's_waitcnt vmcnt({np2-1-2*j-hs})')
            for e in range(2):
                u = 2*hs+e
                A(f'v_mfma_f32_16x16x32_bf16 {v(ACC+4*u,4)}, {v(E[e],4)}, {v(PB+8*j+4*hs,4)}, {v(ACC+4*u,4)}')
    A(f'''v_mul_u32_u24 {v(vO)}, 1152, {v(vO)}
    v_bfe_u32 {v(vt0)}, {v(vln)}, 4, 1
    v_lshl_add_u32 {v(vO)}, {v(vt0)}, 5, {v(vO)}
    v_lshrrev_b32 {v(vt0)}, 5, {v(vln)}
    v_lshl_add_u32 {v(vO)}, {v(vt0)}, 4, {v(vO)}
    s_lshl_b32 {s(s_t)}, {s(s_sg)}, 7
    s_nop 2''')
    stamp(A, 4)
    for i in range(16): A(f'v_add_f32 {v(ACC+i)}, {v(ACC+i)}, {v(9)}')
    for p in range(2):
        b = AF[0]+4*p
        for e in range(2):
            for jj in range(2):
                a = ACC+8*p+4*e+2*jj
                A(f'v_cvt_pk_bf16_f32 {v(b+2*e+jj)}, {v(a)}, {v(a+1)}')
        A(f'''s_nop 1
        v_permlane16_swap_b32 {v(b)}, {v(b+2)}
        v_permlane16_swap_b32 {v(b+1)}, {v(b+3)}
        buffer_store_dwordx4 {v(b,4)}, {v(vO)}, {s(sOUT,4)}, {s(s_t)} offen offset:{64*p}''')
    if STAMPS: A('s_waitcnt vmcnt(0)')
    stamp(A, 5)
    stamp_flush(A, STAMP + li*512*8*64, 2)
    A(f'{done}:\ns_endpgm')
```

```python
S, D, F, H, DH = 2048, 576, 4608, 32, 18
GP = 32768
TSZ = 72*GP
TQ = 0
TK = TQ + TSZ
TH = TK + TSZ
TY = TH + TSZ
TO = TY + TSZ
VB = TO + TSZ
VBSZ = 32*64*1280
ST = VB + VBSZ + 4096
XIMG = ST + 16384
WOX = XIMG + 8*18432
MEAN = WOX + 8*9216
SQ = MEAN + 8192
TX = SQ + 16*8192
PART = TX + TSZ
FLAGS = PART + 8*TSZ
YF = FLAGS
OF = YF + 4096
PF = OF + 4096
FLAG_BYTES = 45056
WS_END = FLAGS + 65536
WS_BYTES = 268435456
ARG = dict(x=0, wqkv=8, wo=16, bx=24, w1=32, w2=40, w3=48, w4=56, out=64, dbg=72, ws=80)
STAMP = WS_END
WS_END = STAMP + 4*512*8*64
```

```python
import os
from asmlib import *
from layout import *
from k1 import C1, C2
ABL = os.environ.get('ABL', '')

ORDER = os.environ.get('ORDER', 'old'); SPREAD = os.environ.get('SPREAD', '1') == '1'
RS = 12288; NR = 5
L_STASH = RS*NR; L_X = L_STASH
MLP_LDS = L_X + 18432
MLP_NV = 256

sX, sM, sWS = 4, 8, 12
s_w, s_r, s_c, s_j, s_rb, s_t, s_t2, s_src, s_m, s_sig, s_cnt, s_jump, s_st, s_pb, s_rbw, s_cur = range(20, 36)
p_w2, p_w3, p_w4 = 40, 42, 44
vln, vDs, vA0, vA1, vc1, vc2, vir = 1, 2, 3, 4, 5, 6, 7
TMP = [8, 9, 10, 11]
Y = 12; ACC = [156, 172]; AF = 188; OWNR = 204; vSt, vT, vx0, vx1 = 252, 253, 254, 255

MAP = {'slice': f's_mov_b32 s{s_j}, s{s_t2}\ns_mov_b32 s{s_rb}, s{s_cnt}',
       'rows': f's_mov_b32 s{s_j}, s{s_sig}\ns_mov_b32 s{s_rb}, s{s_rbw}',
       'half': f's_and_b32 s{s_j}, s{s_t2}, 1\ns_lshl_b32 s{s_j}, s{s_j}, 2\ns_lshr_b32 s{s_rb}, s{s_cnt}, 3\ns_add_u32 s{s_j}, s{s_j}, s{s_rb}\n'
               f's_lshr_b32 s{s_rb}, s{s_t2}, 1\ns_lshl_b32 s{s_rb}, s{s_rb}, 3\ns_and_b32 s{s_t}, s{s_cnt}, 7\ns_add_u32 s{s_rb}, s{s_rb}, s{s_t}'}

THR = int(os.environ.get('THR', 12))
class VM:
    def __init__(self, A): self.A = A; self.n = 0; self.tag = {}; self.done = 0
    def throttle(self, n=None):
        n = THR if n is None else n
        if self.n - self.done > n:
            self.A(f's_waitcnt vmcnt({n})'); self.done = self.n - n
    def emit(self, ln):
        if isinstance(ln, tuple):
            ln, tg = ln
            self.A(ln); self.n += 1; self.tag[tg] = self.n
        else:
            self.A(ln)
            if ln.lstrip().startswith(('buffer_', 'global_')): self.n += 1
    def wait(self, *tags):
        need = max([self.tag.get(t, 0) for t in tags])
        if need > self.done:
            self.A(f's_waitcnt vmcnt({min(63, self.n - need)})'); self.done = need

def matrix_lane_offsets(A, dst, pitch, wrows):
    A(f'''v_lshrrev_b32 {v(TMP[0])}, 3, {v(vln)}
    v_lshlrev_b32 {v(TMP[1])}, 1, {v(TMP[0])}
    v_and_b32 {v(TMP[1])}, 4, {v(TMP[1])}
    v_xor_b32 {v(TMP[1])}, {v(TMP[1])}, {v(vln)}
    v_and_b32 {v(TMP[1])}, 7, {v(TMP[1])}
    {f'v_add_u32 {v(TMP[0])}, {s(wrows)}, {v(TMP[0])}' if wrows else ''}
    v_mul_u32_u24 {v(TMP[0])}, {pitch}, {v(TMP[0])}
    v_lshl_add_u32 {v(dst)}, {v(TMP[1])}, 4, {v(TMP[0])}''')
def abase(dst, hrows, t0, t1):
    return f'''v_lshrrev_b32 {v(t0)}, 5, {v(vln)}
    v_bfe_u32 {v(t1)}, {v(vln)}, 2, 2
    v_mad_u32_u24 {v(t0)}, {v(t0)}, {hrows}, {v(t1)}
    v_lshlrev_b32 {v(t0)}, 7, {v(t0)}
    v_lshrrev_b32 {v(t1)}, 1, {v(t1)}
    v_xor_b32 {v(t1)}, {s(s_c)}, {v(t1)}
    v_lshl_add_u32 {v(t0)}, {v(t1)}, 6, {v(t0)}
    v_bfe_u32 {v(t1)}, {v(vln)}, 4, 1
    v_lshl_add_u32 {v(t0)}, {v(t1)}, 5, {v(t0)}
    v_and_b32 {v(t1)}, 3, {v(vln)}
    v_lshl_add_u32 {v(dst)}, {v(t1)}, 3, {v(t0)}'''.split('\n')
def gelu_pack(acc, dst):
    r = []
    for b in range(0, 16, 4):
        rs = [acc+b+i for i in range(4)]
        r += [f'v_mul_f32 {v(t)}, {v(a)}, {v(a)}' for a, t in zip(rs, TMP)]
        r += [f'v_fma_f32 {v(t)}, {v(t)}, {v(vc2)}, {v(vc1)}' for a, t in zip(rs, TMP)]
        r += [f'v_mul_f32 {v(t)}, {v(t)}, {v(a)}' for a, t in zip(rs, TMP)]
        r += [f'v_exp_f32 {v(t)}, {v(t)}' for a, t in zip(rs, TMP)]
        r += [f'v_fma_f32 {v(t)}, {v(t)}, {v(vir)}, {v(vir)}' for a, t in zip(rs, TMP)]
        r += [f'v_rcp_f32 {v(t)}, {v(t)}' for a, t in zip(rs, TMP)]
        r += [f'v_mul_f32 {v(a)}, {v(a)}, {v(t)}' for a, t in zip(rs, TMP)]
        r += [f'v_cvt_pk_bf16_f32 {v(dst+b//2+i)}, {v(acc+b+2*i)}, {v(acc+b+2*i+1)}' for i in range(2)]
    return r
def pack_store_T(acc, soff, flag):
    r = [f'v_cvt_pk_bf16_f32 {v(acc+i)}, {v(acc+2*i)}, {v(acc+2*i+1)}' for i in range(8)]
    for a in range(2):
        b = acc+4*a
        r += [f'v_permlane32_swap_b32 {v(b)}, {v(b+2)}', f'v_permlane32_swap_b32 {v(b+1)}, {v(b+3)}',
              f'buffer_store_dwordx4 {v(b,4)}, {v(vSt)}, {s(sWS,4)}, {s(soff)} offen {flag}', f's_add_u32 {s(soff)}, {s(soff)}, {2*GP}']
    return r
def token_regs(A, srb):
    A(f'''s_lshl_b32 {s(s_t)}, {s(srb)}, 1
    s_add_u32 {s(s_t)}, {s(s_t)}, {s(s_r)}
    s_lshl_b32 {s(s_t)}, {s(s_t)}, 5
    v_and_b32 {v(vT)}, 31, {v(vln)}
    v_add_u32 {v(vT)}, {s(s_t)}, {v(vT)}
    v_lshrrev_b32 {v(TMP[0])}, 5, {v(vln)}
    v_lshlrev_b32 {v(vSt)}, 15, {v(TMP[0])}
    v_lshl_add_u32 {v(vSt)}, {v(vT)}, 4, {v(vSt)}''')

def prologue(A, s_id):
    A(f'''s_load_dwordx2 s[4:5], s[0:1], {ARG['x']}
    s_load_dwordx4 {s(p_w2,4)}, s[0:1], {ARG['w2']}
    s_load_dwordx2 {s(p_w4,2)}, s[0:1], {ARG['w4']}
    s_load_dwordx2 s[12:13], s[0:1], {ARG['ws']}
    v_lshrrev_b32 {v(TMP[0])}, 6, v0
    v_and_b32 {v(vln)}, 63, v0
    v_readfirstlane_b32 {s(s_w)}, {v(TMP[0])}
    s_and_b32 {s(s_t2)}, {s(s_id)}, 7
    s_lshr_b32 {s(s_cnt)}, {s(s_id)}, 3
    s_and_b32 {s(s_t)}, {s(s_cnt)}, 3
    s_lshl_b32 {s(s_rbw)}, {s(s_t2)}, 2
    s_add_u32 {s(s_rbw)}, {s(s_rbw)}, {s(s_t)}
    s_lshr_b32 {s(s_sig)}, {s(s_cnt)}, 2
    {MAP[os.environ.get('MAP', 'half')]}
    s_mov_b32 s6, {S*D*2}
    s_mov_b32 s7, 0x20000
    s_mov_b32 s11, 0x20000
    s_mov_b32 s14, {WS_BYTES}
    s_mov_b32 s15, 0x20000
    s_and_b32 {s(s_r)}, {s(s_w)}, 1
    s_lshr_b32 {s(s_c)}, {s(s_w)}, 1
    s_lshl_b32 {s(s_m)}, {s(s_w)}, 10''')

def flag_regs(one, off):
    return [f'v_mov_b32 {v(one)}, 1', f'v_min_u32 {v(off)}, 1, {v(vln)}', f'v_lshlrev_b32 {v(off)}, 30, {v(off)}']
def flag_store(A, soff, t0, t1):
    for ln in flag_regs(t0, t1): A(ln)
    A(f'buffer_store_dword {v(t0)}, {v(t1)}, s[12:15], {s(soff)} offen sc1')

def poll(A, soff, t0, t1, scnt, lane=vln, sleep=1):
    lp, got = A.label('poll'), A.label('got')
    A(f'''v_lshlrev_b32 {v(t0)}, 2, {v(lane)}
    s_mov_b32 {s(scnt)}, 0
    s_mov_b32 exec_hi, 0
    {lp}:
    buffer_load_dword {v(t1)}, {v(t0)}, s[12:15], {s(soff)} offen sc1
    s_add_u32 {s(scnt)}, {s(scnt)}, 1
    s_waitcnt vmcnt(0)
    v_cmp_ne_u32 vcc, 1, {v(t1)}
    s_cbranch_vccz {got}
    s_cmp_lt_u32 {s(scnt)}, 0x40000
    s_sleep {sleep}
    s_cbranch_scc1 {lp}
    {got}:
    s_mov_b64 exec, -1''')

def gen_w2(A):
    vm = VM(A)
    MB = OWNR; XR = OWNR+16; M0, R0, SQa = OWNR+26, OWNR+27, OWNR+28; vB = OWNR+29; SH = [OWNR+30+i for i in range(4)]
    token_regs(A, s_rbw)
    matrix_lane_offsets(A, vDs, 1152, None)
    s_q = s_cur
    A(f'''v_lshlrev_b32 {v(vx1)}, 4, {v(vln)}
    s_and_b32 {s(s_q)}, {s(s_sig)}, 3
    s_add_u32 {s(s_t)}, {s(s_q)}, {s(s_w)}
    s_and_b32 {s(s_t)}, {s(s_t)}, 3
    s_mul_i32 {s(s_t)}, {s(s_t)}, 4608
    s_mul_i32 {s(s_cnt)}, {s(s_sig)}, 18432
    s_add_u32 {s(s_cnt)}, {s(s_cnt)}, {s(s_t)}
    s_add_u32 {s(s_cnt)}, {s(s_cnt)}, {XIMG}
    s_mul_i32 {s(s_t2)}, {s(s_w)}, 4608
    s_add_u32 m0, {s(s_t2)}, {L_X}
    s_mul_i32 {s(s_m)}, {s(s_w)}, 3072
    s_lshl_b32 {s(s_src)}, {s(s_sig)}, 7
    s_mul_i32 {s(s_t)}, {s(s_q)}, {144*1152}
    s_add_u32 {s(s_src)}, {s(s_src)}, {s(s_t)}
    s_mul_i32 {s(s_t)}, {s(s_w)}, {24*1152}
    s_add_u32 {s(s_src)}, {s(s_src)}, {s(s_t)}
    s_waitcnt lgkmcnt(0)
    s_mov_b32 s8, {s(p_w2)}
    s_mov_b32 s9, {s(p_w2+1)}
    s_mov_b32 s10, {D*D*2}''')
    for n in range(4):
        vm.emit(f'buffer_load_dwordx4 {v(vx1)}, {s(sWS,4)}, {s(s_cnt)} offen offset:{1024*n} lds')
    A(f's_add_u32 m0, {s(s_t2)}, {L_X+4096}\ns_add_u32 {s(s_cnt)}, {s(s_cnt)}, 4096\ns_mov_b32 exec_hi, 0')
    vm.emit(f'buffer_load_dwordx4 {v(vx1)}, {s(sWS,4)}, {s(s_cnt)} offen lds')
    A('s_mov_b64 exec, -1')
    for g in range(4):
        A(f'''s_add_u32 {s(s_t)}, {s(s_q)}, {g}
        s_bfe_u32 {s(s_t2)}, {s(s_t)}, 0x10001
        s_add_u32 {s(s_t2)}, {s(s_t2)}, 1
        s_and_b32 {s(s_t)}, {s(s_t)}, 1
        s_lshl_b32 {s(s_t)}, {s(s_t)}, 1
        s_sub_u32 {s(s_t)}, {s(s_t)}, 1
        s_mul_i32 {s(s_t)}, {s(s_t)}, {s(s_t2)}
        v_add_u32 {v(TMP[0])}, {s(s_t)}, {v(vT)}
        s_lshl_b32 {s(s_t)}, {s(s_t)}, 4
        v_cmp_gt_u32 vcc, {S}, {v(TMP[0])}
        v_add_u32 {v(TMP[1])}, {s(s_t)}, {v(vSt)}
        v_mov_b32 {v(TMP[2])}, 0x7fff0000
        v_cndmask_b32 {v(SH[g])}, {v(TMP[2])}, {v(TMP[1])}, vcc''')
    A(f's_mul_i32 {s(s_t)}, {s(s_q)}, {18*GP}\ns_add_u32 {s(s_t)}, {s(s_t)}, {TH}')
    def slot(i):
        A(f's_cmp_ge_u32 {s(s_src)}, {576*1152}\ns_cselect_b32 {s(s_t2)}, {576*1152}, 0\ns_sub_u32 {s(s_src)}, {s(s_src)}, {s(s_t2)}')
        A(f's_add_u32 m0, {s(s_m)}, {RS*(i % NR)}\ns_nop 0')
        for m in range(3):
            vm.throttle()
            vm.emit((f'buffer_load_dwordx4 {v(vDs)}, {s(sM,4)}, {s(s_src)} offen offset:{1024*m} lds', ('dma', i)))
            A(f's_add_u32 {s(s_src)}, {s(s_src)}, {8*1152-1024 if m < 2 else 80*1152+2048}')
    for i in range(6):
        if i < NR: slot(i)
        for k in range(6*i, 6*i+6):
            vm.throttle()
            vm.emit((f'buffer_load_dwordx4 {v(Y+4*k,4)}, {v(SH[k//9])}, {s(sWS,4)}, {s(s_t)} offen', ('h', i)))
            A(f's_add_u32 {s(s_t)}, {s(s_t)}, {2*GP}')
            if k % 9 == 8: A(f's_cmp_eq_u32 {s(s_t)}, {TH+TSZ}\ns_cselect_b32 {s(s_t)}, {TH}, {s(s_t)}')
    A(f'''v_and_b32 {v(TMP[0])}, 19, {v(vln)}
    v_min_u32 {v(TMP[0])}, 3, {v(TMP[0])}
    v_lshlrev_b32 {v(TMP[0])}, 3, {v(TMP[0])}
    v_lshrrev_b32 {v(TMP[1])}, 5, {v(vln)}
    v_bfe_u32 {v(TMP[2])}, {v(vln)}, 2, 2
    v_lshl_add_u32 {v(TMP[2])}, {v(TMP[1])}, 3, {v(TMP[2])}
    v_lshl_add_u32 {v(TMP[0])}, {v(TMP[2])}, 5, {v(TMP[0])}
    v_add_u32 {v(vB)}, {L_X}, {v(TMP[0])}
    v_lshlrev_b32 {v(vx0)}, 4, {v(vT)}
    v_lshl_add_u32 {v(vx0)}, {v(TMP[1])}, 3, {v(vx0)}
    s_lshl_b32 {s(s_cnt)}, {s(s_sig)}, 1
    s_add_u32 {s(s_cnt)}, {s(s_cnt)}, {s(s_c)}''')
    for ln in abase(vA0, 8, TMP[0], TMP[1]): A(ln)
    def rd(k):
        b = AF + 4*(k % 4); o = (k % 30)*2048; mb = MB+4*(k % 4)
        return [f'ds_read_b64_tr_b16 {v(b,2)}, {v(vA0)} offset:{o}', f'ds_read_b64_tr_b16 {v(b+2,2)}, {v(vA0)} offset:{o+512}',
                f'ds_read_b64_tr_b16 {v(mb,2)}, {v(vB)} offset:{512*k}', f'ds_read_b64_tr_b16 {v(mb+2,2)}, {v(vB)} offset:{512*k+128}']
    stamp(A, 1)
    vm.wait(('h', 0)); A('s_barrier')
    for k in range(3):
        for ln in rd(k): A(ln)
    A(f'''v_lshlrev_b32 {v(TMP[0])}, 2, {v(vT)}
    s_mov_b32 {s(s_t)}, {ST}
    s_mov_b32 {s(s_t2)}, {ST+8192}''')
    vm.emit(f'buffer_load_dword {v(M0)}, {v(TMP[0])}, {s(sWS,4)}, {s(s_t)} offen')
    vm.emit(f'buffer_load_dword {v(R0)}, {v(TMP[0])}, {s(sWS,4)}, {s(s_t2)} offen')
    A(f's_lshl_b32 {s(s_t)}, {s(s_cnt)}, 17\ns_add_u32 {s(s_t)}, {s(s_t)}, {TX}\ns_lshl_b32 {s(s_t2)}, {s(s_sig)}, 15\ns_add_u32 {s(s_t2)}, {s(s_t2)}, {TX+64*GP}')
    for i in range(2):
        vm.emit(f'buffer_load_dwordx4 {v(XR+4*i,4)}, {v(vSt)}, {s(sWS,4)}, {s(s_t)} offen')
        A(f's_add_u32 {s(s_t)}, {s(s_t)}, {2*GP}')
    vm.emit((f'buffer_load_dwordx2 {v(XR+8,2)}, {v(vx0)}, {s(sWS,4)}, {s(s_t2)} offen', 'x'))
    for k in range(36):
        A(f's_waitcnt lgkmcnt({4*min(2, 35-k)})')
        A(f'v_mfma_f32_32x32x16_bf16 {v(ACC[0],16)}, {v(AF+4*(k%4),4)}, {v(Y+4*k,4)}, ' + ('0' if k == 0 else v(ACC[0],16)))
        A(f'v_mfma_f32_32x32x16_bf16 {v(ACC[1],16)}, {v(MB+4*(k%4),4)}, {v(Y+4*k,4)}, ' + ('0' if k == 0 else v(ACC[1],16)))
        if k % 6 == 3 and k < 33:
            vm.wait(('h', k//6+1), ('dma', k//6+1)); A('s_barrier')
            if k == 9: slot(5)
        if k+3 < 36:
            for ln in rd(k+3): A(ln)
    a0, a1 = ACC
    A(f'''s_lshl_b32 {s(s_st)}, {s(s_cnt)}, 17
    s_add_u32 {s(s_st)}, {s(s_st)}, {TY}
    s_lshr_b32 {s(s_t)}, {s(s_cnt)}, 2
    s_lshl_b32 {s(s_t)}, {s(s_t)}, 15
    s_and_b32 {s(s_cnt)}, {s(s_cnt)}, 3
    s_lshl_b32 {s(s_cnt)}, {s(s_cnt)}, 2
    s_add_u32 {s(s_cnt)}, {s(s_cnt)}, {s(s_t)}
    s_add_u32 {s(s_cnt)}, {s(s_cnt)}, {SQ}
    s_lshl_b32 {s(s_t)}, {s(s_sig)}, 15
    s_add_u32 {s(s_t)}, {s(s_t)}, {TY + 64*GP}
    s_cmp_eq_u32 {s(s_sig)}, 0
    s_mov_b32 {s(s_t2)}, 0x40000000
    s_cselect_b32 {s(s_t2)}, {MEAN}, {s(s_t2)}
    v_mul_f32 {v(TMP[3])}, {v(M0)}, {v(R0)}
    v_mov_b32 {v(SQa)}, 0
    v_permlane32_swap_b32 {v(XR)}, {v(XR+2)}
    v_permlane32_swap_b32 {v(XR+1)}, {v(XR+3)}
    v_permlane32_swap_b32 {v(XR+4)}, {v(XR+6)}
    v_permlane32_swap_b32 {v(XR+5)}, {v(XR+7)}
    v_add_f32 {v(TMP[2])}, {v(a1+4)}, {v(a1+5)}
    v_add_f32 {v(TMP[1])}, {v(a1+4)}, {v(a1+5)}
    s_barrier
    s_cmp_eq_u32 {s(s_c)}, 1
    v_permlane32_swap_b32 {v(TMP[2])}, {v(TMP[1])}''')
    def elem(a, xr, odd):
        A(f'v_and_b32 {v(TMP[0])}, 0xffff0000, {v(xr)}' if odd else f'v_lshlrev_b32 {v(TMP[0])}, 16, {v(xr)}')
        A(f'''v_fma_f32 {v(TMP[1])}, {v(TMP[0])}, {v(R0)}, -{v(TMP[3])}
        v_sub_f32 {v(a)}, {v(a)}, {v(TMP[2])}
        v_add_f32 {v(a)}, {v(a)}, {v(TMP[1])}
        v_fmac_f32 {v(SQa)}, {v(a)}, {v(a)}''')
    nox = A.label('nox')
    A(f's_cbranch_scc1 {nox}')
    for i in range(4): elem(a1+i, XR+8+i//2, i & 1)
    A(f'''v_cvt_pk_bf16_f32 {v(a1)}, {v(a1)}, {v(a1+1)}
    v_cvt_pk_bf16_f32 {v(a1+1)}, {v(a1+2)}, {v(a1+3)}
    v_lshlrev_b32 {v(TMP[1])}, 2, {v(vT)}
    buffer_store_dwordx2 {v(a1,2)}, {v(vx0)}, {s(sWS,4)}, {s(s_t)} offen sc1
    buffer_store_dword {v(TMP[2])}, {v(TMP[1])}, {s(sWS,4)}, {s(s_t2)} offen sc1
    {nox}:''')
    for i in range(16): elem(a0+i, XR+i//2, i & 1)
    A(f'v_mov_b32 {v(TMP[0])}, {v(SQa)}')
    for ln in pack_store_T(a0, s_st, 'sc1'): A(ln)
    A(f'''v_permlane32_swap_b32 {v(TMP[0])}, {v(SQa)}
    v_lshlrev_b32 {v(TMP[1])}, 4, {v(vT)}
    v_add_f32 {v(TMP[0])}, {v(TMP[0])}, {v(SQa)}
    buffer_store_dword {v(TMP[0])}, {v(TMP[1])}, {s(sWS,4)}, {s(s_cnt)} offen sc1
    s_lshl_b32 {s(s_t)}, {s(s_rbw)}, 3
    s_add_u32 {s(s_t)}, {s(s_t)}, {s(s_sig)}
    s_lshl_b32 {s(s_t)}, {s(s_t)}, 2
    s_add_u32 {s(s_t)}, {s(s_t)}, {s(s_w)}
    s_lshl_b32 {s(s_t)}, {s(s_t)}, 2
    s_add_u32 {s(s_t)}, {s(s_t)}, {YF}
    s_waitcnt vmcnt(0)''')
    flag_store(A, s_t, TMP[0], TMP[1])

def gen_main(A, stflag, li, flags=True):
    vm = VM(A)
    P3, P4 = 9216, 1152
    vD4 = vT
    def piece(g, m):
        ph2 = g >= 54; i = g % 6
        r = [f's_add_u32 m0, {s(s_m)}, {(g % NR)*RS}'] if m == 0 else []
        if not ph2:
            inc = 8*P3-1024 if m else (80*P3+2048 + (128-576*P3 if i == 0 else 0))
            r.append(f's_add_u32 {s(s_src)}, {s(s_src)}, {inc & 0xffffffff}' if (g, m) != (0, 0) else 's_nop 0')
            return r + [(f'buffer_load_dwordx4 {v(vDs)}, {s(sM,4)}, {s(s_src)} offen offset:{1024*m} lds', ('slot', g))]
        n = 3*i + m
        inc = ((16 if n % 2 else 48)*P4 if n else 128-528*P4) + (2048 if m == 0 else -1024)
        r.append(f's_add_u32 {s(s_src)}, {s(s_src)}, {inc & 0xffffffff}' if (g, m) != (54, 0) else f's_mul_i32 {s(s_src)}, {s(s_j)}, {576*P4}')
        return r + [(f'buffer_load_dwordx4 {v(vD4)}, {s(sX,4)}, {s(s_src)} offen offset:{1024*m} lds', ('slot', g))]
    A(f's_mul_i32 {s(s_t)}, {s(s_w)}, 24')
    matrix_lane_offsets(A, vDs, P3, s_t)
    A(f'''s_mov_b32 s8, {s(p_w3)}
    s_mov_b32 s9, {s(p_w3+1)}
    s_mov_b32 s10, {D*F*2}
    s_mul_i32 {s(s_src)}, {s(s_j)}, 1152''')
    for g in range(NR-1):
        for m in range(3):
            for ln in piece(g, m): vm.emit(ln)
    token_regs(A, s_rb)
    for ln in abase(vA0, 8, TMP[0], TMP[1]): A(ln)
    nsh = {'slice': 1, 'half': 4, 'rows': 8}[os.environ.get('MAP', 'half')]
    A(f'''v_lshrrev_b32 {v(TMP[2])}, 3, v0
    v_mul_u32_u24 {v(TMP[2])}, {GP-1024}, {v(TMP[2])}
    v_lshl_add_u32 {v(TMP[2])}, v0, 7, {v(TMP[2])}
    v_cmp_gt_u32 vcc, {min(256, 576//nsh)}, v0
    v_mov_b32 {v(TMP[1])}, 0x7fff0000
    s_and_b32 {s(s_jump)}, {s(s_j)}, {nsh-1}
    s_mul_i32 {s(s_jump)}, {s(s_jump)}, {72//nsh*GP}
    s_lshl_b32 {s(s_t)}, {s(s_rb)}, 10
    v_cndmask_b32 {v(TMP[2])}, {v(TMP[1])}, {v(TMP[2])}, vcc
    s_add_u32 {s(s_jump)}, {s(s_jump)}, {s(s_t)}
    s_add_u32 {s(s_jump)}, {s(s_jump)}, {TY}''')
    stamp(A, 2)
    A(f's_lshl_b32 {s(s_t)}, {s(s_rb)}, 7\ns_add_u32 {s(s_t)}, {s(s_t)}, {YF}')
    poll(A, s_t, TMP[0], TMP[1], s_t2)
    stamp(A, 3)
    if os.environ.get('YPF', '1') == '1': vm.emit(f'buffer_load_dword {v(TMP[3])}, {v(TMP[2])}, {s(sWS,4)}, {s(s_jump)} offen sc1')
    A(f's_mov_b32 {s(s_cur)}, {TY}')
    def yload(k): return [(f'buffer_load_dwordx4 {v(Y+4*k,4)}, {v(vSt)}, {s(sWS,4)}, {s(s_cur)} offen sc1', ('y', k)), f's_add_u32 {s(s_cur)}, {s(s_cur)}, {2*GP}']
    YA = int(os.environ.get('YA', 6))
    for k in range(YA):
        for ln in yload(k): vm.emit(ln)
    A(f'''v_lshrrev_b32 {v(TMP[0])}, 5, {v(vln)}
    v_lshlrev_b32 {v(TMP[0])}, 16, {v(TMP[0])}
    v_lshl_add_u32 {v(vc1)}, {v(vT)}, 4, {v(TMP[0])}
    s_mov_b32 {s(s_sig)}, {SQ}
    s_mov_b32 {s(s_rbw)}, {SQ+GP}''')
    A(f'''s_lshl_b32 {s(s_t)}, {s(s_w)}, 12
    s_add_u32 {s(s_t)}, {s(s_t)}, {L_STASH}
    v_add_u32 {v(vx0)}, {s(s_t)}, {v(vx1)}
    s_mov_b32 s4, {s(p_w4)}
    s_mov_b32 s5, {s(p_w4+1)}
    s_mov_b32 s6, {D*F*2}
    s_lshl_b32 {s(s_t)}, {s(s_c)}, 5
    s_lshl_b32 {s(s_t2)}, {s(s_r)}, 3
    s_add_u32 {s(s_t)}, {s(s_t)}, {s(s_t2)}''')
    matrix_lane_offsets(A, vD4, P4, s_t)
    A(f'''s_mul_i32 {s(s_st)}, {s(s_j)}, {TSZ}
    s_lshl_b32 {s(s_t)}, {s(s_c)}, 17
    s_add_u32 {s(s_st)}, {s(s_st)}, {s(s_t)}
    s_add_u32 {s(s_st)}, {s(s_st)}, {PART}
    s_mul_i32 {s(s_pb)}, {s(s_rb)}, {9*128}
    s_lshl_b32 {s(s_t)}, {s(s_j)}, 4
    s_add_u32 {s(s_pb)}, {s(s_pb)}, {s(s_t)}
    s_lshl_b32 {s(s_t)}, {s(s_w)}, 2
    s_add_u32 {s(s_pb)}, {s(s_pb)}, {s(s_t)}
    s_add_u32 {s(s_pb)}, {s(s_pb)}, {PF}''')
    sqld = [(f'buffer_load_dwordx4 {v(OWNR+4*i,4)}, {v(vc1)}, {s(sWS,4)}, {s((s_sig, s_rbw)[i])} offen sc1', 'sq') for i in range(2)]
    rstd = [f'v_add_f32 {v(OWNR)}, {v(OWNR)}, {v(OWNR+i)}' for i in range(1, 8)] + f'''v_mov_b32 {v(OWNR+1)}, {v(OWNR)}
    v_mov_b32 {v(TMP[0])}, {f32(1e-5)}
    s_nop 0
    v_permlane32_swap_b32 {v(OWNR)}, {v(OWNR+1)}
    v_add_f32 {v(OWNR)}, {v(OWNR)}, {v(OWNR+1)}
    v_fmac_f32 {v(TMP[0])}, {f32(1.0/D)}, {v(OWNR)}
    v_rsq_f32 {v(TMP[1])}, {v(TMP[0])}
    v_sqrt_f32 {v(vir)}, {v(TMP[0])}
    s_nop 0
    v_mul_f32 {v(vc1)}, {f32(C1)}, {v(TMP[1])}
    v_mul_f32 {v(vc2)}, {v(TMP[1])}, {v(TMP[1])}
    v_mul_f32 {v(vc2)}, {v(vc2)}, {v(TMP[1])}
    v_mul_f32 {v(vc2)}, {f32(C2)}, {v(vc2)}'''.split('\n')
    own = {0: Y, 1: Y+8, 8: Y+88}; own.update({t: OWNR+8*(t-2) for t in range(2, 8)})
    par = {t: Y+16+8*t for t in range(9)}
    vK, vP, vXr, vOne, vOff = vA1, vDs, vA0, Y+96, Y+97
    PD = 3
    def rdA(K):
        g = K//6; b = AF + 4*(K % 4); pos = (g % NR)*RS
        if K < 324:
            o = pos + (K % 6)*2048
            return [f'ds_read_b64_tr_b16 {v(b,2)}, {v(vA0)} offset:{o}', f'ds_read_b64_tr_b16 {v(b+2,2)}, {v(vA0)} offset:{o+512}']
        o = pos + (K % 3)*1024; base = vP if K % 6 >= 3 else vK
        return [f'ds_read_b64_tr_b16 {v(b,2)}, {v(base)} offset:{o}', f'ds_read_b64_tr_b16 {v(b+2,2)}, {v(base)} offset:{o+3072}']
    vm.wait(('slot', 0)); A('s_barrier')
    for K in range(PD):
        for ln in rdA(K): A(ln)
    stamp(A, 4)
    A(f"s_setprio {os.environ.get('PM1', 3)}")
    def set_flag():
        return [f'buffer_store_dword {v(vOne)}, {v(vOff)}, {s(sWS,4)}, {s(s_pb)} offen sc1', f's_add_u32 {s(s_pb)}, {s(s_pb)}, 128']
    def xw(ts): return [f'ds_write_b128 {v(vx0)}, {v(own[t]+4*hf,4)} offset:{2048*i+1024*hf}' for i, t in enumerate(ts) for hf in range(2)]
    def xr(ts, dst, base): return [f'ds_read_b128 {v(dst[t]+4*hf,4)}, {v(base)} offset:{2048*i+1024*hf}' for i, t in enumerate(ts) for hf in range(2)]
    def epilogue(tp):
        e = pack_store_T(ACC[(tp+1) & 1], s_st, stflag)
        e[-2] = (e[-2], ('st', tp)); e[-1] = f's_add_u32 {s(s_st)}, {s(s_st)}, {6*GP}'
        return e
    for sl in range(18):
        ph2 = sl >= 9; t = sl - 9
        if 'L' in ABL:
            if sl in (3, 12):
                lab = A.label('rl'); A(f's_mov_b32 {s(s_cnt)}, {5 if sl == 3 else 5}\n.p2align 6\n{lab}:')
            if sl in (4, 13):
                A(f's_sub_u32 {s(s_cnt)}, {s(s_cnt)}, 1\ns_cmp_lg_u32 {s(s_cnt)}, 0\ns_cbranch_scc1 {lab}')
            if 4 <= sl <= 7 or 13 <= sl <= 16:
                keep = len(A.lines)
        fills = []
        if sl == 0:
            for k in range(YA, 36): fills.append((k-YA, k-YA+1, yload(k)))
            fills.append((36-YA, 37-YA, sqld))
        if sl == 1:
            fills.append((0, 3, [('WAIT', 'sq')] + rstd))
        if 1 <= sl <= 9:
            p = sl-1; a = ACC[p & 1]
            if p < 2:
                f = gelu_pack(a, a) + [f'ds_write_b128 {v(vx0)}, {v(a,4)} offset:{2048*p}', f'ds_write_b128 {v(vx0)}, {v(a+4,4)} offset:{2048*p+1024}']
            else:
                f = gelu_pack(a, own[p])
            fills.append((3, 33 if sl < 9 else 21, f))
        if sl == 8:
            fills.append((1, 4, [f's_lshl_b32 {s(s_t)}, {s(s_c)}, 14', f's_sub_u32 {s(s_t)}, 8192, {s(s_t)}', f'v_add_u32 {v(vx1)}, {s(s_t)}, {v(vx0)}']))
            fills.append((4, 8, xr((0, 1), own, vx0)))
            fills.append((8, 12, xr((0, 1), par, vx1)))
            fills.append((16, 19, xw((2, 3)))); fills.append((22, 25, xr((2, 3), par, vx1)))
            fills.append((28, 31, xw((4, 5)))); fills.append((34, 36, xr((4, 5), par, vx1)))
            fills.append((14, 21, abase(vK, 4, Y+32, Y+33) + [f's_mul_i32 {s(s_t)}, {s(s_c)}, 6144', f'v_add_u32 {v(vK)}, {s(s_t)}, {v(vK)}',
                                                            f'v_xor_b32 {v(vP)}, 6144, {v(vK)}']))
        if sl == 9:
            fills.append((0, 1, [f"s_setprio {os.environ.get('PM2', 3)}"]))
            fills.append((4, 7, xw((6, 7)))); fills.append((10, 13, xr((6, 7), par, vx1)))
            fills.append((22, 24, xw((8,)))); fills.append((28, 30, xr((8,), par, vx1)))
            fills.append((24, 27, flag_regs(vOne, vOff)))
        if ph2 and t >= 1:
            e = epilogue(t-1)
            if 's' in ABL: e = [x for x in e if 'buffer_store' not in (x[0] if isinstance(x, tuple) else x)]
            fills.append((4, 16, e))
        if ph2 and t >= 2 and flags:
            fills.append((4, 5, [('WAIT', ('st', t-2))] + set_flag()))
        prog = [0]*len(fills)
        epi = next((i for i, f in enumerate(fills) if f[:2] == (4, 16)), -1)
        for k in range(36):
            K = 36*sl + k; g = K//6
            nout = min(PD-1, 647-K)
            if sl == 0: vm.wait(('y', k))
            A(f's_waitcnt lgkmcnt({2*nout})')
            if not ph2:
                acc, b = ACC[sl & 1], Y+4*k
            else:
                n = 3*(k//6) + k % 3; acc = ACC[(t+1) & 1]; b = (par if k % 6 >= 3 else own)[n//2] + 4*(n & 1)
            A(f'v_mfma_f32_32x32x16_bf16 {v(acc,16)}, {v(AF+4*(K%4),4)}, {v(b,4)}, ' + ('0' if k == 0 else v(acc,16)))
            def do_fills(valu):
                for fi, (a, z, f) in enumerate(fills):
                    if 'g' in ABL and len(f) > 100: continue
                    if k >= a and (ORDER != 'vfirst' or (len(f) > 100 or fi == epi) == valu):
                        upto = min(len(f), -(-len(f)*(k-a+1)//(z-a)))
                        for ln in f[prog[fi]:upto]:
                            if isinstance(ln, tuple) and ln[0] == 'WAIT': vm.wait(ln[1])
                            else: vm.emit(ln)
                        prog[fi] = upto
            if ORDER == 'vfirst': do_fills(True)
            if k % 6 == 6-PD and g+1 < 108:
                if 'v' not in ABL: vm.wait(('slot', g+1))
                if 'b' not in ABL: A('s_barrier')
            if K+PD < 648 and 'r' not in ABL:
                for ln in rdA(K+PD): A(ln)
            pc = {3: (g+NR-1, 0), 4: (g+NR-1, 1), 5: (g+NR-1, 2)} if not SPREAD else {3: (g+NR-1, 0), 5: (g+NR-1, 1), 1: (g+NR-2, 2)}
            if k % 6 in pc and NR-1 <= pc[k % 6][0] < 108:
                for ln in piece(*pc[k % 6]):
                    if 'd' not in ABL: vm.emit(ln)
            do_fills(False)
        assert all(p == len(f[2]) for p, f in zip(prog, fills)) or ABL
        if 'L' in ABL and (4 <= sl <= 7 or 13 <= sl <= 16): del A.lines[keep:]
        if sl == 8: stamp(A, 5)
    stamp(A, 6)
    if flags:
        vm.wait(('st', 7))
        for ln in set_flag(): A(ln)
    A('s_nop 11')
    for ln in epilogue(8): vm.emit(ln)
    if flags or STAMPS: A('s_waitcnt vmcnt(0)')
    if flags: A(set_flag()[0])
    stamp(A, 7)
    stamp_flush(A, STAMP + li*512*8*64, 2)
    A('s_endpgm')
```

```python
import os
from asmlib import *
from layout import *
from mlp import poll

RP = int(os.environ.get('RP', 3)); RT = int(os.environ.get('RT', 5))
def gen_red(A, s_id, li):
    sWO, sWS, sOUT, sX = 4, 12, 8, 16
    s_w, s_rb, s_sg, s_t, s_t2, s_src, s_m, s_two, s_base = 20, 34, 35, 38, 39, 40, 41, 42, 43
    vln, vDs, vDr, vB, vt0, vt1, vt2, vO, vM, vT = 1, 228, 229, 230, 231, 232, 233, 234, 235, 236
    vAa = 12; E = [240, 244]; ACC = 24; AF = [40, 56]; OB = 72; PB = 144; XB = 216; vA0 = 224
    A(f'''s_load_dwordx2 s[4:5], s[0:1], {ARG['wo']}
    s_load_dwordx2 s[8:9], s[0:1], {ARG['out']}
    s_and_b32 {s(s_rb)}, {s(s_id)}, 7
    s_lshl_b32 {s(s_rb)}, {s(s_rb)}, 2
    s_bfe_u32 {s(s_t)}, {s(s_id)}, 0x20003
    s_add_u32 {s(s_rb)}, {s(s_rb)}, {s(s_t)}
    s_lshr_b32 {s(s_t)}, {s(s_id)}, 5
    s_add_u32 {s(s_sg)}, {s(s_t)}, 1
    s_cmp_eq_u32 {s(s_t)}, 0
    s_cselect_b32 {s(s_sg)}, 0, {s(s_sg)}
    s_cselect_b32 {s(s_two)}, 1, 0
    s_mov_b32 s6, {D*D*2}
    s_mov_b32 s7, 0x20000
    s_mov_b32 s10, {S*D*2}
    s_mov_b32 s11, 0x20000
    s_lshl_b32 {s(s_t)}, {s(s_rb)}, 2
    s_add_u32 {s(s_t)}, {s(s_t)}, {s(s_w)}
    s_lshl_b32 {s(s_t)}, {s(s_t)}, 4
    v_and_b32 {v(vt0)}, 15, {v(vln)}
    v_add_u32 {v(vT)}, {s(s_t)}, {v(vt0)}
    v_lshrrev_b32 {v(vt1)}, 4, {v(vln)}
    v_lshlrev_b32 {v(vB)}, 15, {v(vt1)}
    v_lshl_add_u32 {v(vB)}, {v(vT)}, 4, {v(vB)}
    v_mul_u32_u24 {v(vO)}, 1152, {v(vT)}
    v_bfe_u32 {v(vt0)}, {v(vln)}, 4, 1
    v_lshl_add_u32 {v(vO)}, {v(vt0)}, 5, {v(vO)}
    v_lshrrev_b32 {v(vt0)}, 5, {v(vln)}
    v_lshl_add_u32 {v(vO)}, {v(vt0)}, 4, {v(vO)}
    v_lshlrev_b32 {v(vT)}, 2, {v(vT)}
    v_lshrrev_b32 {v(vt0)}, 3, {v(vln)}
    v_and_b32 {v(vt1)}, 2, {v(vt0)}
    s_and_b32 {s(s_t)}, {s(s_w)}, 1
    s_lshl_b32 {s(s_t)}, {s(s_t)}, 2
    v_or_b32 {v(vt1)}, {s(s_t)}, {v(vt1)}
    v_xor_b32 {v(vt1)}, {v(vt1)}, {v(vln)}
    v_and_b32 {v(vt1)}, 7, {v(vt1)}
    v_lshlrev_b32 {v(vt1)}, 4, {v(vt1)}
    v_and_b32 {v(vt2)}, 4, {v(vt0)}
    v_add_u32 {v(vt2)}, {v(vt2)}, {v(vt0)}
    v_mul_u32_u24 {v(vt2)}, 1152, {v(vt2)}
    v_add_u32 {v(vDs)}, {v(vt2)}, {v(vt1)}
    v_lshrrev_b32 {v(vt2)}, 1, {v(vt0)}
    v_lshl_add_u32 {v(vt2)}, {v(vt2)}, 4, {v(vt0)}
    v_mul_u32_u24 {v(vt2)}, 1152, {v(vt2)}
    v_add_u32 {v(vDr)}, {v(vt2)}, {v(vt1)}
    s_lshr_b32 {s(s_t)}, {s(s_w)}, 1
    s_mul_i32 {s(s_t)}, {s(s_t)}, {18*1152}
    s_and_b32 {s(s_t2)}, {s(s_w)}, 1
    s_mul_i32 {s(s_t2)}, {s(s_t2)}, {4*1152}
    s_add_u32 {s(s_base)}, {s(s_t)}, {s(s_t2)}
    s_lshl_b32 {s(s_m)}, {s(s_w)}, 10
    v_lshrrev_b32 {v(vt0)}, 4, {v(vln)}
    v_bfe_u32 {v(vt1)}, {v(vln)}, 2, 2
    v_lshl_add_u32 {v(vt2)}, {v(vt0)}, 3, {v(vt1)}
    v_lshlrev_b32 {v(vt2)}, 7, {v(vt2)}
    v_and_b32 {v(vM)}, 3, {v(vln)}
    v_lshl_add_u32 {v(vt2)}, {v(vM)}, 3, {v(vt2)}
    v_lshrrev_b32 {v(vt1)}, 1, {v(vt1)}
    v_and_b32 {v(vM)}, 1, {v(vt0)}
    v_lshl_or_b32 {v(vt1)}, {v(vM)}, 1, {v(vt1)}''')
    for u in range(4):
        A(f'v_xor_b32 {v(vM)}, {u}, {v(vt1)}\nv_lshl_add_u32 {v(vA0+u)}, {v(vM)}, 5, {v(vt2)}')
    A(f'''v_and_b32 {v(vt1)}, 15, {v(vln)}
    v_lshlrev_b32 {v(vt0)}, 3, {v(vt0)}
    v_sub_u32 {v(vt0)}, {v(vt1)}, {v(vt0)}
    v_and_b32 {v(vt1)}, 1, {v(vln)}
    v_lshlrev_b32 {v(vt1)}, 4, {v(vt1)}
    v_mov_b32 {v(vt2)}, 0x3f80
    v_lshlrev_b32 {v(vt1)}, {v(vt1)}, {v(vt2)}
    v_ashrrev_i32 {v(vt0)}, 1, {v(vt0)}''')
    for e in range(2):
        for d in range(4):
            A(f'v_cmp_eq_u32 vcc, {d - 8*e}, {v(vt0)}\ns_nop 1\nv_cndmask_b32 {v(E[e]+d)}, 0, {v(vt1)}, vcc')
    A('s_waitcnt lgkmcnt(0)')
    yield 0
    def wo_dma():
        A(f's_lshl_b32 {s(s_t)}, {s(s_sg)}, 7\ns_add_u32 {s(s_src)}, {s(s_base)}, {s(s_t)}')
        for st in range(16):
            if st == 4: yield 4
            if st >= 4: A(f's_waitcnt vmcnt({RT})')
            A(f'''s_add_u32 m0, {s(s_m)}, {4096*st}
            s_nop 0
            buffer_load_dwordx4 {v(vDs)}, {s(sWO,4)}, {s(s_src)} offen lds
            s_add_u32 {s(s_src)}, {s(s_src)}, {36*1152}''')
        A(f'''s_mul_i32 {s(s_src)}, {s(s_w)}, {72*1152}
        s_add_u32 {s(s_src)}, {s(s_src)}, {s(s_t)}
        s_add_u32 {s(s_src)}, {s(s_src)}, {16*1152}''')
        for st in range(16, 18):
            A(f'''s_add_u32 m0, {s(s_m)}, {4096*st}
            s_nop 0
            buffer_load_dwordx4 {v(vDr)}, {s(sWO,4)}, {s(s_src)} offen lds
            s_add_u32 {s(s_src)}, {s(s_src)}, {4*72*1152}''')
        A(f's_lshl_b32 {s(s_t)}, {s(s_sg)}, 18\ns_add_u32 {s(s_t)}, {s(s_t)}, {TX}')
        for hs in range(2):
            A(f'buffer_load_dwordx4 {v(XB+4*hs,4)}, {v(vB)}, {s(sWS,4)}, {s(s_t)} offen\ns_add_u32 {s(s_t)}, {s(s_t)}, {4*GP}')
    for n in wo_dma(): yield n
    A(f's_lshl_b32 {s(s_t)}, {s(s_rb)}, 7\ns_add_u32 {s(s_t)}, {s(s_t)}, {OF}\ns_setprio 0')
    poll(A, s_t, vt0, vt1, s_t2, sleep=int(os.environ.get('RSL', 4)))
    A(f's_setprio {RP}')
    stamp(A, 4)
    A(f's_mov_b32 {s(s_t)}, {TO}')
    for st in range(18):
        A(f'buffer_load_dwordx4 {v(OB+4*st,4)}, {v(vB)}, {s(sWS,4)}, {s(s_t)} offen sc1\ns_add_u32 {s(s_t)}, {s(s_t)}, {4*GP}\ns_waitcnt vmcnt({RT})')
    unit, done = A.label('runit'), A.label('rdone')
    A(f'{unit}:')
    for u in range(4): A(f'v_mov_b32 {v(vAa+u)}, {v(vA0+u)}')
    def rd(st):
        o = (st % 9)*4096; r = []
        for u in range(4):
            b = AF[st & 1]+4*u
            r += [f'ds_read_b64_tr_b16 {v(b,2)}, {v(vAa+u)} offset:{o}', f'ds_read_b64_tr_b16 {v(b+2,2)}, {v(vAa+u)} offset:{o+512}']
        return r
    A('s_waitcnt vmcnt(0)\ns_barrier')
    for ln in rd(0): A(ln)
    for st in range(18):
        nxt = []
        if st == 8: nxt += [f'v_add_u32 {v(vAa+u)}, {9*4096}, {v(vAa+u)}' for u in range(4)]
        if st < 17: nxt += rd(st+1)
        for ln in nxt: A(ln)
        A(f's_waitcnt lgkmcnt({8 if st < 17 else 0})')
        for u in range(4):
            A(f'v_mfma_f32_16x16x32_bf16 {v(ACC+4*u,4)}, {v(AF[st&1]+4*u,4)}, {v(OB+4*st,4)}, ' + ('0' if st == 0 else v(ACC+4*u,4)))
    def ident(b, hs):
        for e in range(2):
            u = 2*hs+e
            A(f'v_mfma_f32_16x16x32_bf16 {v(ACC+4*u,4)}, {v(E[e],4)}, {v(b,4)}, {v(ACC+4*u,4)}')
    for hs in range(2): ident(XB+4*hs, hs)
    stamp(A, 5)
    A(f'''s_mul_i32 {s(s_t)}, {s(s_rb)}, 9
    s_add_u32 {s(s_t)}, {s(s_t)}, {s(s_sg)}
    s_lshl_b32 {s(s_t)}, {s(s_t)}, 7
    s_add_u32 {s(s_t)}, {s(s_t)}, {PF}
    s_setprio 0''')
    poll(A, s_t, vt0, vt1, s_t2, sleep=int(os.environ.get('RSL', 4)))
    A(f's_setprio {RP}')
    stamp(A, 6)
    A(f's_lshl_b32 {s(s_t2)}, {s(s_sg)}, 18\ns_add_u32 {s(s_t)}, {s(s_t2)}, {PART}')
    for j in range(9):
        if j == 8: A(f's_add_u32 {s(s_t)}, {s(s_t2)}, {TY}')
        for hs in range(2):
            A(f'buffer_load_dwordx4 {v(PB+8*j+4*hs,4)}, {v(vB)}, {s(sWS,4)}, {s(s_t)} offen sc1')
            A(f's_add_u32 {s(s_t)}, {s(s_t)}, {4*GP if hs == 0 else TSZ-4*GP}')
    A(f's_mov_b32 {s(s_t)}, {MEAN}\nbuffer_load_dword {v(vM)}, {v(vT)}, {s(sWS,4)}, {s(s_t)} offen sc1')
    for j in range(9):
        for hs in range(2):
            A(f's_waitcnt vmcnt({18-2*j-hs})')
            ident(PB+8*j+4*hs, hs)
    A(f's_lshl_b32 {s(s_t)}, {s(s_sg)}, 7\ns_waitcnt vmcnt(0)\ns_nop 5')
    for i in range(16): A(f'v_add_f32 {v(ACC+i)}, {v(ACC+i)}, {v(vM)}')
    for p in range(2):
        b = AF[0]+4*p
        for e in range(2):
            for jj in range(2):
                a = ACC+8*p+4*e+2*jj
                A(f'v_cvt_pk_bf16_f32 {v(b+2*e+jj)}, {v(a)}, {v(a+1)}')
        A(f'''s_nop 1
        v_permlane16_swap_b32 {v(b)}, {v(b+2)}
        v_permlane16_swap_b32 {v(b+1)}, {v(b+3)}
        buffer_store_dwordx4 {v(b,4)}, {v(vO)}, {s(sOUT,4)}, {s(s_t)} offen offset:{64*p} {os.environ.get('OST', 'sc1')}''')
    A(f'''s_cmp_eq_u32 {s(s_two)}, 0
    s_cbranch_scc1 {done}
    s_mov_b32 {s(s_two)}, 0
    s_mov_b32 {s(s_sg)}, 1
    s_barrier''')
    for n in wo_dma(): pass
    A(f's_branch {unit}\n{done}:')
    if STAMPS: A('s_waitcnt vmcnt(0)')
    stamp(A, 7)
    stamp_flush(A, STAMP + li*512*8*64, 2)
    A('s_endpgm')
```

```python
import sys
sys.path.insert(0, 'work')
from asmlib import *
from layout import *
import k1, att, mlp, k3, red

HEADER = open('parallel_sum__softmax_full_mha__mixer_s_mlp__prompt.s.ref').read().split('; Override launch')[0]

def build(stages):
    A = Asm(); launches = []; descs = []
    A('.amdgcn_target "amdgcn-amd-amdhsa--gfx950"')
    A('.text'); A('.p2align 8'); A('code_start:')
    for st in stages:
        g = st(A)
        launches += g['launch']; descs += g['desc']
    A('.text'); A('code_end:')
    A('.fill 64, 4, 0xbf800000')
    hdr = HEADER + ''.join(f'; @launch kernel={k} grid=({g},1,1) block=({b},1,1) lds={l}\n' for k, g, b, l in launches)
    return hdr + A.text() + ''.join(descs)

def st_k1(A):
    nv = k1.gen_k1(A, 'proj_kernel', 'code_start', 'code_end')
    return dict(launch=[('proj_kernel', 256, 512, k1.K1_LDS)], desc=[kernel_desc('proj_kernel', nv)])

def guard(A, n):
    go = A.label('go')
    A(f's_cmp_lt_u32 s2, {n}\ns_cbranch_scc1 {go}\ns_endpgm\n{go}:')

import os
def weight_prefetch(A, when):
    vo3, vo4, vd = 160, 163, 164
    if when == 'setup':
        A(f'''s_load_dwordx4 s[48:51], s[0:1], {ARG['w3']}
        s_lshr_b32 s60, s3, 3
        s_lshl_b32 s60, s60, 2
        s_add_u32 s60, s60, s20
        s_mul_i32 s60, s60, 384
        v_add_u32 v{vo4}, s60, v1
        s_and_b32 s60, s3, 1
        s_lshl_b32 s60, s60, 2
        s_bfe_u32 s61, s3, 0x20001
        s_add_u32 s60, s60, s61
        s_mul_i32 s61, s60, 1152
        s_mul_i32 s62, s60, {576*1152}''')
        A(f'''s_waitcnt lgkmcnt(0)
        s_mov_b32 s52, s50
        s_mov_b32 s53, s51
        s_mov_b32 s50, {D*F*2}
        s_mov_b32 s51, 0x20000
        s_add_u32 s54, s62, {576*1152}
        s_mov_b32 s55, 0x20000
        s_mov_b32 s56, 58255''')
    elif when == 'loop':
        l4, le = A.label('pf4'), A.label('pfe')
        r = [f's_cmp_ge_u32 s29, 4', f's_cbranch_scc1 {le}', 's_cmp_ge_u32 s29, 2', f's_cbranch_scc1 {l4}']
        for n in range(3):
            r += [f'v_mul_u32_u24 v{vo3}, s56, v{vo4}', f'v_lshrrev_b32 v{vo3}, 22, v{vo3}', f'v_mul_u32_u24 v{vo3}, {9216-1152}, v{vo3}',
                  f'v_lshl_add_u32 v{vo3}, v{vo4}, 4, v{vo3}', f'buffer_load_dwordx4 v[{vd}:{vd+3}], v{vo3}, s[48:51], s61 offen', f'v_add_u32 v{vo4}, 64, v{vo4}']
        r += [f's_branch {le}', f'{l4}:']
        for n in range(3):
            r += [f'v_subrev_u32 v{vo4}, 64, v{vo4}', f'v_lshlrev_b32 v{vo3}, 4, v{vo4}', f'buffer_load_dwordx4 v[{vd}:{vd+3}], v{vo3}, s[52:55], s62 offen']
        return r + [f'{le}:']

def st_main2(A): return st_main(A, False)
def st_main(A, fused=True):
    li = 1
    kernel_begin(A, 'main_kernel'); guard(A, 512)
    lm = A.label('mlprole')
    pa = int(os.environ.get('PA', 2)); pm = int(os.environ.get('PM', 3))
    A(f's_and_b32 s3, s2, 255\ns_cmp_ge_u32 s2, 256\ns_cbranch_scc1 {lm}')
    if 'A' in mlp.ABL: A('s_endpgm')
    att.gen_att(A, 3, prio=pa, li=li, prefetch=weight_prefetch, red=red.gen_red(A, 3, li) if fused else None)
    A('.p2align 6'); A(f'{lm}:')
    stamp(A, 0)
    if pm: A(f's_setprio {pm}')
    mlp.prologue(A, 3)
    mlp.gen_w2(A)
    mlp.gen_main(A, 'sc1', li, fused)
    return dict(launch=[('main_kernel', 512, 256, mlp.MLP_LDS)], desc=[kernel_desc('main_kernel', 256)])

def st_k3(A):
    k3.gen_k3(A, 'final_kernel', li=2)
    return dict(launch=[('final_kernel', k3.K3_GRID, 320, k3.K3_LDS)], desc=[kernel_desc('final_kernel', k3.K3_NV)])

def st_nop(A, n=[0]):
    n[0] += 1
    name = f'nop{n[0]}_kernel'
    kernel_begin(A, name); A('s_endpgm')
    return dict(launch=[(name, 256, 64, 0)], desc=[kernel_desc(name, 8)])

if __name__ == '__main__':
    out = sys.argv[1]
    open(out, 'w').write(build([globals()['st_'+n] for n in sys.argv[2:]]))
```

```python
class Asm:
    def __init__(self):
        self.lines = []
        self.uid = 0
    def __call__(self, s=''):
        for ln in s.split('\n'):
            ln = ln.strip()
            if not ln: continue
            self.lines.append(ln if ln.endswith(':') or ln.startswith('.') else '  ' + ln)
    def label(self, base):
        self.uid += 1
        return f'L{base}_{self.uid}'
    def text(self):
        return '\n'.join(self.lines) + '\n'

def v(a, n=1):
    return f'v{a}' if n == 1 else f'v[{a}:{a+n-1}]'
def s(a, n=1):
    return f's{a}' if n == 1 else f's[{a}:{a+n-1}]'

def kernel_begin(A, name):
    A('.text'); A(f'.globl {name}'); A('.p2align 8'); A(f'.type {name},@function'); A(f'{name}:')

def kernel_desc(name, nvgpr, nsgpr=96):
    acc = min(256, (nvgpr + 3)//4*4)
    return f'''.section .rodata,"a"
.p2align 6
.amdhsa_kernel {name}
  .amdhsa_next_free_vgpr {nvgpr}
  .amdhsa_next_free_sgpr {nsgpr}
  .amdhsa_accum_offset {acc}
  .amdhsa_group_segment_fixed_size 0
  .amdhsa_kernarg_size 88
  .amdhsa_user_sgpr_count 2
  .amdhsa_user_sgpr_kernarg_segment_ptr 1
  .amdhsa_system_sgpr_workgroup_id_x 1
  .amdhsa_float_denorm_mode_32 3
.end_amdhsa_kernel
'''

def interleave(main, fill):
    out = []; n = len(main); m = len(fill); k = 0
    for i, x in enumerate(main):
        out.append(x)
        upto = m*(i+1)//n
        out += fill[k:upto]; k = upto
    return out

import struct
def f32(x):
    return '0x%08x' % struct.unpack('<I', struct.pack('<f', x))[0]

import os
STAMPS = os.environ.get('STAMPS') == '1'
DBGHOOK = [None]
def stamp(A, k):
    if DBGHOOK[0]: DBGHOOK[0](A, k)
    if not STAMPS: return
    A(f's_memtime s[{64+4*k}:{65+4*k}]')
    A(f's_memrealtime s[{66+4*k}:{67+4*k}]')
def stamp_flush(A, region, s_wg, srd=12, nst=8):
    if not STAMPS: return
    A('s_waitcnt lgkmcnt(0)')
    A('s_mov_b64 exec, 1')
    A(f'v_mov_b32 v2, s20')
    A(f's_lshl_b32 s63, s{s_wg}, 3')
    A(f'v_add_u32 v2, s63, v2')
    A(f'v_lshlrev_b32 v2, 6, v2')
    A(f'v_add_u32 v2, {region}, v2')
    for k in range(nst):
        A(f'v_mov_b32 v4, s{64+4*k}')
        A(f'v_mov_b32 v5, s{66+4*k}')
        A(f'buffer_store_dwordx2 v[4:5], v2, s[{srd}:{srd+3}], 0 offen offset:{8*k}')
        A('s_nop 1')

DBGT = os.environ.get('DBGT') == '1'
def dbg_stamp(A, li, word, wg):
    if not DBGT: return
    sk = A.label('dbg')
    A(f'''s_cmp_lg_u32 s2, {wg}
    s_cbranch_scc1 {sk}
    s_load_dwordx2 s[88:89], s[0:1], 72
    s_memrealtime s[92:93]
    s_waitcnt lgkmcnt(0)
    s_add_u32 s88, s88, {512*(int(os.environ.get('NL', 3))-1-li)}
    s_addc_u32 s89, s89, 0
    s_mov_b32 s90, 256
    s_mov_b32 s91, 0x20000
    v_mov_b32 v250, s92
    v_mov_b32 v251, {4*word}
    buffer_store_dword v250, v251, s[88:91], 0 offen
    s_waitcnt vmcnt(0)
    {sk}:''')
```

```python
import math
from asmlib import *
from layout import *

import os
STF = os.environ.get('K1ST', 'sc1')
CPW = int(os.environ.get('CPW', 1))
SLOT = 17408; NSLOT = 9
L_STM = SLOT*NSLOT; L_STR = L_STM + 512; L_CS = L_STR + 512
K1_LDS = L_CS + 640
QS = (DH ** -0.5) * math.log2(math.e)
C1 = -2.0*math.sqrt(2.0/math.pi)*math.log2(math.e); C2 = C1*0.044715

def gelu_block(A, regs, tmp, c1, c2, ir):
    n = len(tmp)
    for b in range(0, len(regs), n):
        rs = regs[b:b+n]
        for r, t in zip(rs, tmp): A(f'v_mul_f32 {v(t)}, {v(r)}, {v(r)}')
        for r, t in zip(rs, tmp): A(f'v_fma_f32 {v(t)}, {v(t)}, {v(c2)}, {v(c1)}')
        for r, t in zip(rs, tmp): A(f'v_mul_f32 {v(t)}, {v(t)}, {v(r)}')
        for r, t in zip(rs, tmp): A(f'v_exp_f32 {v(t)}, {v(t)}')
        for r, t in zip(rs, tmp): A(f'v_fma_f32 {v(t)}, {v(t)}, {v(ir)}, {v(ir)}')
        for r, t in zip(rs, tmp): A(f'v_rcp_f32 {v(t)}, {v(t)}')
        for r, t in zip(rs, tmp): A(f'v_mul_f32 {v(r)}, {v(r)}, {v(t)}')

def code_prefetch(A, start, end, nwaves, s_w, s_i, stmp, vtmp, vdst, nparts=32):
    lab = A.label('pc')
    A(f's_getpc_b64 {s(stmp,2)}')
    A(f'{lab}:')
    A(f's_add_u32 {s(stmp)}, {s(stmp)}, {start}-{lab}')
    A(f's_addc_u32 {s(stmp+1)}, {s(stmp+1)}, (({start}-{lab})>>32)')
    A(f's_mul_i32 {s(stmp+2)}, {s(s_i)}, {nwaves}')
    A(f's_add_u32 {s(stmp+2)}, {s(stmp+2)}, {s(s_w)}')
    A(f's_lshl_b32 {s(stmp+2)}, {s(stmp+2)}, {8+CPW}')
    A(f'v_and_b32 {v(vtmp)}, 63, v0')
    A(f'v_lshlrev_b32 {v(vtmp)}, {2+CPW}, {v(vtmp)}')
    A(f'v_add_u32 {v(vtmp)}, {s(stmp+2)}, {v(vtmp)}')
    A(f'v_min_u32 {v(vtmp)}, {end}-{start}-8, {v(vtmp)}')
    A(f'global_load_dword {v(vdst)}, {v(vtmp)}, {s(stmp,2)}')

def gen_k1(A, name, code_start, code_end):
    sX, sW, sWS, sW2 = 4, 8, 12, 16
    s_w, s_tg, s_cg, s_rb, s_cb, s_pw, s_ox, s_ow, s_stepw, s_mx, s_mw, s_t = 20,21,22,23,24,25,26,27,28,29,30,31
    s_ex = 32; s_m1, s_m2, s_m3, s_md = 34, 36, 38, 40; s_t2 = 42; s_i = 46; s_cbl = 47; s_ob = 48; s_kd = 49; s_kc = 50; s_tx = 51; s_br = 52
    vXs, vWs, vW9 = 1, 2, 3
    vXa, vWa, vCa = 4, 7, 10
    vln = 13; vt0, vt1, vt2 = 14, 15, 16
    vones = 20
    vbar = 24
    vpf = 19; vPx, vPw = 210, 211
    LEAD = int(os.environ.get('LEAD', 4))
    FR = [32, 64]
    ACC = 96
    ACS = 136
    AC4 = 140
    AG = [140, 144]; AS = [148, 152]
    E = 156
    NV = 256 if DBGT else 216
    kernel_begin(A, name)
    done = A.label('done'); done2 = A.label('done2')
    stamp(A, 0)
    A(f'''s_cmp_ge_u32 s2, 256
    s_cbranch_scc1 {done2}
    s_load_dwordx4 s[4:7], s[0:1], {ARG['x']}
    s_load_dwordx4 s[16:19], s[0:1], {ARG['w1']}
    s_load_dwordx2 s[12:13], s[0:1], {ARG['ws']}
    v_lshrrev_b32 v1, 6, v0
    v_and_b32 {v(vln)}, 63, v0
    v_readfirstlane_b32 {s(s_w)}, v1
    s_lshr_b32 {s(s_i)}, s2, 3
    s_and_b32 {s(s_t)}, s2, 1
    s_lshl_b32 {s(s_t)}, {s(s_t)}, 3
    s_and_b32 {s(s_rb)}, {s(s_i)}, 7
    s_add_u32 {s(s_rb)}, {s(s_rb)}, {s(s_t)}
    s_bfe_u32 {s(s_t)}, s2, 0x20001
    s_lshl_b32 {s(s_t)}, {s(s_t)}, 2
    s_lshr_b32 {s(s_cbl)}, {s(s_i)}, 3
    s_add_u32 {s(s_cb)}, {s(s_cbl)}, {s(s_t)}
    s_and_b32 {s(s_tg)}, {s(s_w)}, 3
    s_lshr_b32 {s(s_cg)}, {s(s_w)}, 2''')
    code_prefetch(A, code_start, code_end, 8, s_w, s_i, s_t2, vt0, vpf)
    A(f'''v_lshrrev_b32 {v(vt0)}, 2, {v(vln)}
    s_lshl_b32 {s(s_t)}, {s(s_rb)}, 3
    s_add_u32 {s(s_t)}, {s(s_t)}, {s(s_w)}
    s_lshl_b32 {s(s_t)}, {s(s_t)}, 4
    v_add_u32 {v(vt1)}, {s(s_t)}, {v(vt0)}
    v_mul_u32_u24 {v(vt1)}, 1152, {v(vt1)}
    v_lshrrev_b32 {v(vt0)}, 4, {v(vln)}
    v_and_b32 {v(vt0)}, 2, {v(vt0)}
    v_xor_b32 {v(vt0)}, {v(vt0)}, {v(vln)}
    v_and_b32 {v(vt0)}, 3, {v(vt0)}
    v_lshl_add_u32 {v(vXs)}, {v(vt0)}, 4, {v(vt1)}
    s_movk_i32 {s(s_pw)}, 3456
    s_cmp_ge_u32 {s(s_cb)}, 12
    s_cselect_b32 {s(s_pw)}, 1152, {s(s_pw)}
    s_cselect_b32 {s(s_t)}, {s(s_cbl)}, {s(s_cb)}
    s_mul_i32 {s(s_ob)}, {s(s_t)}, 288
    s_lshl_b32 {s(s_stepw)}, {s(s_pw)}, 5
    s_lshl_b32 {s(s_mx)}, {s(s_w)}, 10
    s_add_u32 {s(s_mw)}, {s(s_mx)}, 8192''')
    def wsrc(dst, qreg):
        A(f'''v_mul_u32_u24 {v(vt1)}, 3641, {v(qreg)}
        v_lshrrev_b32 {v(vt1)}, 16, {v(vt1)}
        v_mul_u32_u24 {v(vt2)}, 18, {v(vt1)}
        v_sub_u32 {v(vt2)}, {v(qreg)}, {v(vt2)}
        v_lshlrev_b32 {v(vt2)}, 4, {v(vt2)}
        v_add_u32 {v(vt2)}, {s(s_ob)}, {v(vt2)}
        v_lshrrev_b32 {v(dst)}, 1, {v(vt1)}
        v_xor_b32 {v(dst)}, {v(dst)}, {v(vt1)}
        v_and_b32 {v(dst)}, 4, {v(dst)}
        v_mul_u32_u24 {v(dst)}, 3, {v(dst)}
        v_xor_b32 {v(vt1)}, {v(dst)}, {v(vt1)}
        v_mad_u32_u24 {v(dst)}, {v(vt1)}, {s(s_pw)}, {v(vt2)}''')
    wsrc(vWs, 0)
    A(f'v_add_u32 {v(vt0)}, 512, {v(vln)}')
    wsrc(vW9, vt0)
    A(f'''s_and_b32 {s(s_kd)}, {s(s_i)}, 7
    s_lshl_b32 {s(s_kd)}, {s(s_kd)}, 1
    s_mul_i32 {s(s_t)}, {s(s_cbl)}, 5
    s_add_u32 {s(s_kd)}, {s(s_kd)}, {s(s_t)}
    s_sub_u32 {s(s_t)}, {s(s_kd)}, 18
    s_cselect_b32 {s(s_kd)}, {s(s_kd)}, {s(s_t)}
    s_mov_b32 {s(s_kc)}, {s(s_kd)}
    s_lshl_b32 {s(s_ox)}, {s(s_kd)}, 6
    s_mul_i32 {s(s_ow)}, {s(s_kd)}, {s(s_stepw)}
    s_waitcnt lgkmcnt(0)
    s_cmp_ge_u32 {s(s_cb)}, 12
    s_cselect_b32 s8, s16, s6
    s_cselect_b32 s9, s17, s7
    s_mov_b32 s10, {D*3*D*2}
    s_cselect_b32 s10, {D*D*2}, s10
    s_mov_b32 s11, 0x20000
    s_mov_b32 s6, {S*D*2}
    s_mov_b32 s7, 0x20000
    s_mov_b32 s16, s18
    s_mov_b32 s17, s19
    s_mov_b32 s18, {D*D*2}
    s_mov_b32 s19, 0x20000
    s_mov_b32 s14, {WS_BYTES}
    s_mov_b32 s15, 0x20000
    s_nop 0''')
    def dma(step):
        base = (step % NSLOT)*SLOT; sk = A.label('n9')
        return [f's_add_u32 m0, {s(s_mx)}, {base}',
                f's_cmp_lg_u32 {s(s_w)}, {step % 8}',
                f'buffer_load_dwordx4 {v(vXs)}, {s(sX,4)}, {s(s_ox)} offen lds',
                f's_cbranch_scc1 {sk}\ns_mov_b32 m0, {base+16384}\ns_nop 0\nbuffer_load_dwordx4 {v(vW9)}, {s(sW,4)}, {s(s_ow)} offen lds\n{sk}:',
                f's_add_u32 m0, {s(s_mw)}, {base}',
                f's_add_u32 {s(s_ox)}, {s(s_ox)}, 64',
                f'buffer_load_dwordx4 {v(vWs)}, {s(sW,4)}, {s(s_ow)} offen lds',
                f's_add_u32 {s(s_ow)}, {s(s_ow)}, {s(s_stepw)}',
                f's_cmp_eq_u32 {s(s_ox)}, {18*64}\ns_cselect_b32 {s(s_ox)}, 0, {s(s_ox)}\ns_cselect_b32 {s(s_ow)}, 0, {s(s_ow)}']
    A(f'''s_mul_i32 {s(s_t)}, {s(s_rb)}, 12
    s_add_u32 {s(s_t)}, {s(s_t)}, {s(s_cb)}
    s_mul_i32 {s(s_t)}, {s(s_t)}, 3
    s_add_u32 {s(s_t)}, {s(s_t)}, {s(s_w)}
    s_mul_i32 {s(s_t2)}, {s(s_t)}, 1152
    v_lshlrev_b32 {v(vt0)}, 4, {v(vln)}''')
    for st in range(2):
        for ln in dma(st): A(ln)
    A(f'''v_cmp_gt_u32 vcc, 8, {v(vln)}
    v_mov_b32 {v(vt2)}, 0x7fff0000
    s_mov_b32 {s(s_br)}, {s(s_t2)}
    v_mov_b32 {v(17)}, {v(vt0)}
    v_cndmask_b32 {v(18)}, {v(vt2)}, {v(vt0)}, vcc''')
    A(f'''s_mov_b32 {s(s_t2+2)}, {s(s_t)}
    v_and_b32 {v(vt0)}, 15, {v(vln)}
    s_lshl_b32 {s(s_t)}, {s(s_tg)}, 5
    v_add_u32 {v(vt1)}, {s(s_t)}, {v(vt0)}
    v_lshlrev_b32 {v(vt1)}, 6, {v(vt1)}
    v_lshrrev_b32 {v(vt0)}, 2, {v(vln)}
    v_and_b32 {v(vt0)}, 2, {v(vt0)}
    v_lshrrev_b32 {v(vt2)}, 4, {v(vln)}
    v_xor_b32 {v(vt0)}, {v(vt0)}, {v(vt2)}
    v_lshl_add_u32 {v(vXa)}, {v(vt0)}, 4, {v(vt1)}
    v_lshrrev_b32 {v(vt0)}, 5, {v(vln)}
    v_lshlrev_b32 {v(vt0)}, 4, {v(vt0)}
    v_bfe_u32 {v(vt1)}, {v(vln)}, 2, 3
    v_add_u32 {v(vt0)}, {v(vt0)}, {v(vt1)}
    v_mul_u32_u24 {v(vt0)}, 288, {v(vt0)}
    v_and_b32 {v(vt1)}, 3, {v(vln)}
    v_lshl_add_u32 {v(vt0)}, {v(vt1)}, 3, {v(vt0)}
    s_mul_i32 {s(s_t)}, {s(s_cg)}, 160
    s_add_u32 {s(s_t)}, {s(s_t)}, 8192
    v_add_u32 {v(vWa)}, {s(s_t)}, {v(vt0)}
    s_lshl_b32 {s(s_t)}, {s(s_tg)}, 5
    v_add_u32 {v(vCa)}, {s(s_t)}, {v(vWa)}''')
    for b in (vXa, vWa, vCa):
        A(f'v_add_u32 {v(b+1)}, {3*SLOT}, {v(b)}')
        A(f'v_add_u32 {v(b+2)}, {6*SLOT}, {v(b)}')
    for i in range(4): A(f'v_mov_b32 {v(vones+i)}, 0x3f803f80')
    A(f'''s_mov_b32 {s(s_m1)}, 0x22222222
    s_mov_b32 {s(s_m1+1)}, 0x22222222
    s_mov_b32 {s(s_m2)}, 0x44444444
    s_mov_b32 {s(s_m2+1)}, 0x44444444
    s_mov_b32 {s(s_m3)}, 0x88888888
    s_mov_b32 {s(s_m3+1)}, 0x88888888
    s_mov_b32 {s(s_md)}, 0x00F0000F
    s_mov_b32 {s(s_md+1)}, 0xF0000F00''')

    A(f'''v_lshrrev_b32 {v(vPx)}, 4, {v(vln)}
    v_lshlrev_b32 {v(vPx)}, 15, {v(vPx)}
    v_and_b32 {v(vt0)}, 15, {v(vln)}
    v_lshl_add_u32 {v(vPx)}, {v(vt0)}, 4, {v(vPx)}
    s_lshl_b32 {s(s_tx)}, {s(s_rb)}, 2
    s_add_u32 {s(s_tx)}, {s(s_tx)}, {s(s_tg)}
    s_lshl_b32 {s(s_tx)}, {s(s_tx)}, 1
    s_add_u32 {s(s_tx)}, {s(s_tx)}, {s(s_cg)}
    s_lshl_b32 {s(s_tx)}, {s(s_tx)}, 8
    s_add_u32 {s(s_tx)}, {s(s_tx)}, {TX}''')
    def xcopy(step, cg):
        sk = A.label('nx')
        return [f's_and_b32 {s(s_t)}, {s(s_kc)}, 15\ns_cmp_lg_u32 {s(s_t)}, {s(s_cb)}\ns_cbranch_scc1 {sk}\ns_lshl_b32 {s(s_t)}, {s(s_kc)}, 17\n'
                f's_add_u32 {s(s_t)}, {s(s_t)}, {s(s_tx)}\nbuffer_store_dwordx4 {v(FR[step & 1]+4*cg,4)}, {v(vPx)}, {s(sWS,4)}, {s(s_t)} offen {STF}\n{sk}:',
                f's_add_u32 {s(s_kc)}, {s(s_kc)}, 1\ns_cmp_eq_u32 {s(s_kc)}, 18\ns_cselect_b32 {s(s_kc)}, 0, {s(s_kc)}']
    def reads(step, nm):
        f = FR[step & 1]; sl = step % NSLOT; th = sl//3; o = (sl % 3)*SLOT
        r = [f'ds_read_b128 {v(f,4)}, {v(vXa+th)} offset:{o}', f'ds_read_b128 {v(f+4,4)}, {v(vXa+th)} offset:{o+1024}']
        for u in range(nm):
            r.append(f'ds_read_b64_tr_b16 {v(f+8+4*u,2)}, {v(vWa+th)} offset:{o+32*u}')
            r.append(f'ds_read_b64_tr_b16 {v(f+10+4*u,2)}, {v(vWa+th)} offset:{o+32*u+2304}')
        r.append(f'ds_read_b64_tr_b16 {v(f+28,2)}, {v(vCa+th)} offset:{o}')
        r.append(f'ds_read_b64_tr_b16 {v(f+30,2)}, {v(vCa+th)} offset:{o+2304}')
        return r
    def mf(d, a, b, first):
        return f'v_mfma_f32_16x16x32_bf16 {v(d,4)}, {v(a,4)}, {v(b,4)}, ' + ('0' if first else v(d,4))
    def mfmas(step, cg, orient):
        f = FR[step & 1]; nm = 5 if cg == 0 else 4; fi = step == 0
        r = []
        for u in range(nm):
            for nt in range(2):
                wfr, xfr = f+8+4*u, f+4*nt
                r.append(mf(ACC+8*u+4*nt, wfr, xfr, fi) if orient == 1 else mf(ACC+8*u+4*nt, xfr, wfr, fi))
        r.append(mf(ACS, vones, f+28, fi))
        if cg == 0:
            r.append(mf(AC4, vones, f+24, fi))
        else:
            for nt in range(2):
                r.append(mf(AG[nt], f+4*nt, f+4*nt, fi))
                r.append(mf(AS[nt], vones, f+4*nt, fi))
        return r
    nz = A.label('nz')
    A(f'''s_cmp_ge_u32 s2, {FLAG_BYTES//4096}
    s_cbranch_scc1 {nz}
    v_mov_b32 {v(E)}, 0
    v_mov_b32 {v(E+1)}, 0
    v_lshlrev_b32 {v(vt0)}, 3, v0
    s_lshl_b32 {s(s_t)}, s2, 12
    s_add_u32 {s(s_t)}, {s(s_t)}, {FLAGS}
    buffer_store_dwordx2 {v(E,2)}, {v(vt0)}, {s(sWS,4)}, {s(s_t)} offen
    {nz}:''')
    lab = {(cg, o): A.label(f'k1_{cg}{o}') for cg in (0, 1) for o in (1, 2)}
    labV = A.label('isv')
    A(f'''s_lshr_b32 {s(s_t)}, {s(s_cb)}, 2
    s_cmp_eq_u32 {s(s_t)}, 2
    s_cbranch_scc1 {labV}
    s_cmp_eq_u32 {s(s_cg)}, 0
    s_cbranch_scc1 {lab[(0,1)]}
    s_branch {lab[(1,1)]}
    {labV}:
    s_cmp_eq_u32 {s(s_cg)}, 0
    s_cbranch_scc1 {lab[(0,2)]}
    s_branch {lab[(1,2)]}''')
    bar_job = A.label('barjob')
    for cg in (0, 1):
        for orient in (1, 2):
            nm = 5 if cg == 0 else 4
            A('.p2align 6')
            A(f'{lab[(cg,orient)]}:')
            stamp(A, 1)
            A(f's_waitcnt vmcnt(2)\ns_barrier')
            stamp(A, 2)
            issued = 2
            for ln in reads(0, nm): A(ln)
            for ln in dma(2): A(ln)
            issued = 3; landed = 0
            A('s_waitcnt lgkmcnt(0)')
            for st in range(18):
                fill = []
                if st+1 < 18:
                    if landed < st+1:
                        landed = min(st+1 + (1 if st >= 2 else 0), 17)
                        A(f's_waitcnt vmcnt({2*(issued-1-landed)})\ns_barrier')
                    fill = reads(st+1, nm)
                    for _ in range(2):
                        if issued < min(18, st+1+LEAD):
                            fill = fill + dma(issued); issued += 1
                    if st == 16:
                        fill = fill + [f'buffer_load_dwordx4 {v(vbar,4)}, {v(17)}, {s(sW2,4)}, {s(s_br)} offen',
                                       f'buffer_load_dwordx4 {v(vbar+4,4)}, {v(18)}, {s(sW2,4)}, {s(s_br)} offen offset:1024',
                                       f's_mul_i32 {s(s_t2)}, {s(s_i)}, {162*128}', f'v_lshlrev_b32 {v(vPw)}, 4, v0'] + \
                               [f'buffer_load_dwordx4 {v(212,4)}, {v(vPw)}, {s(sW2,4)}, {s(s_t2)} offen\ns_add_u32 {s(s_t2)}, {s(s_t2)}, 8192' for _ in range(3)]
                fill = xcopy(st, cg) + fill
                if st == 9: stamp(A, 3)
                for ln in interleave(mfmas(st, cg, orient), fill): A(ln)
                if st+1 < 18: A('s_waitcnt lgkmcnt(0)')
            stamp(A, 4)
            A(f'''v_and_b32 {v(vt0)}, 15, {v(vln)}
            s_mul_i32 {s(s_t)}, {s(s_cg)}, 5
            s_add_u32 {s(s_t)}, {s(s_t)}, {s(s_tg)}
            s_lshl_b32 {s(s_t)}, {s(s_t)}, 4
            v_add_u32 {v(vt1)}, {s(s_t)}, {v(vt0)}
            v_lshlrev_b32 {v(vt1)}, 2, {v(vt1)}
            v_lshlrev_b32 {v(vt2)}, 2, {v(vt0)}
            v_add_u32 {v(vt1)}, {L_CS}, {v(vt1)}
            v_add_u32 {v(vt2)}, {L_CS+256}, {v(vt2)}
            s_lshl_b32 {s(s_t)}, {s(s_tg)}, 5
            v_add_u32 {v(E)}, {s(s_t)}, {v(vt0)}
            v_lshlrev_b32 {v(E)}, 2, {v(E)}
            v_add_u32 {v(E+1)}, {L_STM}, {v(E)}
            s_nop 1
            ds_write_b32 {v(vt1)}, {v(ACS)}''')
            if cg == 0:
                A(f'ds_write_b32 {v(vt2)}, {v(AC4)}')
            else:
                notq, noth, stdone = A.label('notq'), A.label('noth'), A.label('std')
                for nt in range(2):
                    g, sm = AG[nt], AS[nt]
                    A(f'''v_cndmask_b32 {v(g)}, {v(g)}, {v(g+1)}, {s(s_m1,2)}
                    v_cndmask_b32 {v(g)}, {v(g)}, {v(g+2)}, {s(s_m2,2)}
                    v_cndmask_b32 {v(g)}, {v(g)}, {v(g+3)}, {s(s_m3,2)}
                    v_mul_f32 {v(sm)}, {f32(1.0/D)}, {v(sm)}
                    v_mul_f32 {v(g)}, {f32(1.0/D)}, {v(g)}
                    v_fma_f32 {v(g)}, -{v(sm)}, {v(sm)}, {v(g)}
                    v_max_f32 {v(g)}, 0, {v(g)}
                    v_add_f32 {v(g+1)}, {f32(1e-5)}, {v(g)}
                    v_rsq_f32 {v(g+1)}, {v(g+1)}''')
                if orient == 1:
                    A(f's_cmp_ge_u32 {s(s_cb)}, 4\ns_cbranch_scc1 {notq}')
                    for nt in range(2): A(f'v_mul_f32 {v(AG[nt]+1)}, {f32(QS)}, {v(AG[nt]+1)}')
                    A(f'{notq}:\ns_cmp_lt_u32 {s(s_cb)}, 12\ns_cbranch_scc1 {noth}')
                    for nt in range(2):
                        g = AG[nt]
                        A(f'''v_mul_f32 {v(g+2)}, {v(g+1)}, {v(g+1)}
                        v_mov_b32 {v(g+3)}, {f32(1e-5)}
                        v_fmac_f32 {v(g+3)}, {v(g+2)}, {v(g)}
                        v_rsq_f32 {v(g+3)}, {v(g+3)}
                        s_nop 0
                        v_mul_f32 {v(g+1)}, {v(g+1)}, {v(g+3)}''')
                    A(f'{noth}:')
                A(f's_nop 0\ns_mov_b64 exec, {s(s_md,2)}')
                for nt in range(2):
                    A(f'ds_write_b32 {v(E+1)}, {v(AS[nt])} offset:{64*nt}')
                    A(f'ds_write_b32 {v(E+1)}, {v(AG[nt]+1)} offset:{512+64*nt}')
                if orient == 1:
                    A(f'''s_cmp_lg_u32 {s(s_cb)}, 4
                    s_cbranch_scc1 {stdone}
                    s_lshl_b32 {s(s_t)}, {s(s_rb)}, 9
                    s_add_u32 {s(s_t)}, {s(s_t)}, {ST}
                    s_add_u32 {s(s_t2)}, {s(s_t)}, 8192''')
                    for nt in range(2):
                        A(f'buffer_store_dword {v(AS[nt])}, {v(E)}, {s(sWS,4)}, {s(s_t)} offen offset:{64*nt}')
                        A(f'buffer_store_dword {v(AG[nt]+1)}, {v(E)}, {s(sWS,4)}, {s(s_t2)} offen offset:{64*nt}')
                    A(f'{stdone}:')
                A('s_mov_b64 exec, -1')
            A('s_waitcnt lgkmcnt(0)\ns_barrier')
            stamp(A, 5)
            u0 = 5*cg
            if orient == 1:
                CS = E+8; MEAN = E+2; R = E+4; P = E+32; TMP = list(range(E+40, E+48)); CC = E+48
                A(f'''v_lshrrev_b32 {v(vt0)}, 4, {v(vln)}
                v_lshlrev_b32 {v(vt0)}, 4, {v(vt0)}
                v_add_u32 {v(vt0)}, {L_CS+64*u0}, {v(vt0)}''')
                for nt in range(2):
                    A(f'ds_read_b32 {v(MEAN+nt)}, {v(E+1)} offset:{64*nt}')
                    A(f'ds_read_b32 {v(R+nt)}, {v(E+1)} offset:{512+64*nt}')
                for u in range(nm): A(f'ds_read_b128 {v(CS+4*u,4)}, {v(vt0)} offset:{64*u}')
                A(f'''v_lshrrev_b32 {v(vt1)}, 5, {v(vln)}
                v_lshlrev_b32 {v(vt1)}, 15, {v(vt1)}
                v_and_b32 {v(vt2)}, 31, {v(vln)}
                v_lshl_add_u32 {v(vt1)}, {v(vt2)}, 4, {v(vt1)}
                s_lshr_b32 {s(s_t)}, {s(s_cb)}, 2
                s_min_u32 {s(s_t)}, {s(s_t)}, 2
                s_mul_i32 {s(s_t)}, {s(s_t)}, {TSZ}
                s_mul_i32 {s(s_t2)}, {s(s_cbl)}, {18*GP}
                s_add_u32 {s(s_t)}, {s(s_t)}, {s(s_t2)}
                s_lshl_b32 {s(s_t2)}, {s(s_rb)}, 2
                s_add_u32 {s(s_t2)}, {s(s_t2)}, {s(s_tg)}
                s_lshl_b32 {s(s_t2)}, {s(s_t2)}, 9
                s_add_u32 {s(s_t)}, {s(s_t)}, {s(s_t2)}
                s_add_u32 {s(s_t)}, {s(s_t)}, {TQ + 2*u0*GP}
                s_waitcnt lgkmcnt(0)''')
                for u in range(nm):
                    for nt in range(2):
                        for j in range(4):
                            a = ACC+8*u+4*nt+j
                            A(f'v_fma_f32 {v(a)}, -{v(MEAN+nt)}, {v(CS+4*u+j)}, {v(a)}')
                def pack_store(u):
                    p = P + 4*(u & 1)
                    for nt in range(2):
                        for jj in range(2):
                            a = ACC+8*u+4*nt+2*jj
                            A(f'v_cvt_pk_bf16_f32 {v(p+2*nt+jj)}, {v(a)}, {v(a+1)}')
                    A(f'''s_nop 1
                    v_permlane16_swap_b32 {v(p)}, {v(p+2)}
                    v_permlane16_swap_b32 {v(p+1)}, {v(p+3)}
                    buffer_store_dwordx4 {v(p,4)}, {v(vt1)}, {s(sWS,4)}, {s(s_t)} offen {STF}
                    s_add_u32 {s(s_t)}, {s(s_t)}, {2*GP}''')
                ish = A.label('ish')
                A(f's_cmp_ge_u32 {s(s_cb)}, 12\ns_cbranch_scc1 {ish}')
                for u in range(nm):
                    for nt in range(2):
                        for j in range(4):
                            a = ACC+8*u+4*nt+j
                            A(f'v_mul_f32 {v(a)}, {v(R+nt)}, {v(a)}')
                    pack_store(u)
                A(f's_branch {bar_job}')
                A(f'{ish}:')
                for nt in range(2):
                    c = CC+4*nt
                    A(f'''v_mul_f32 {v(c)}, {f32(C1)}, {v(R+nt)}
                    v_mul_f32 {v(c+1)}, {v(R+nt)}, {v(R+nt)}
                    v_mul_f32 {v(c+1)}, {v(c+1)}, {v(R+nt)}
                    v_mul_f32 {v(c+1)}, {f32(C2)}, {v(c+1)}
                    v_rcp_f32 {v(c+2)}, {v(R+nt)}''')
                for u in range(nm):
                    for nt in range(2):
                        c = CC+4*nt
                        gelu_block(A, [ACC+8*u+4*nt+j for j in range(4)], TMP[:4], c, c+1, c+2)
                    pack_store(u)
                A(f's_branch {done}')
            else:
                MEAN = E+8; R = E+16; CS = E+24; P = E+32; AD = E+40
                A(f'''v_lshrrev_b32 {v(vt0)}, 4, {v(vln)}
                v_lshlrev_b32 {v(vt0)}, 4, {v(vt0)}
                s_lshl_b32 {s(s_t)}, {s(s_tg)}, 7
                s_add_u32 {s(s_t)}, {s(s_t)}, {L_STM}
                v_add_u32 {v(vt0)}, {s(s_t)}, {v(vt0)}
                v_and_b32 {v(vt1)}, 15, {v(vln)}
                v_lshlrev_b32 {v(vt2)}, 2, {v(vt1)}
                v_add_u32 {v(vt2)}, {L_CS+64*u0}, {v(vt2)}''')
                for nt in range(2):
                    A(f'ds_read_b128 {v(MEAN+4*nt,4)}, {v(vt0)} offset:{64*nt}')
                    A(f'ds_read_b128 {v(R+4*nt,4)}, {v(vt0)} offset:{512+64*nt}')
                for u in range(nm): A(f'ds_read_b32 {v(CS+u)}, {v(vt2)} offset:{64*u}')
                A(f'''v_lshrrev_b32 {v(vt0)}, 4, {v(vln)}
                v_mul_u32_u24 {v(vt0)}, 320, {v(vt0)}
                s_lshl_b32 {s(s_t)}, {s(s_rb)}, 2
                s_add_u32 {s(s_t)}, {s(s_t)}, {s(s_tg)}
                s_mul_i32 {s(s_t)}, {s(s_t)}, 1280
                s_mul_i32 {s(s_t2)}, {s(s_cbl)}, {8*64*1280}
                s_add_u32 {s(s_t)}, {s(s_t)}, {s(s_t2)}
                s_add_u32 {s(s_t)}, {s(s_t)}, {VB}
                s_mov_b32 {s(s_t2)}, {64*1280 - 18*16}''')
                for u in range(nm):
                    A(f'''v_add_u32 {v(AD+u)}, {16*(u0+u)}, {v(vt1)}
                    v_mul_u32_u24 {v(vt2)}, 3641, {v(AD+u)}
                    v_lshrrev_b32 {v(vt2)}, 16, {v(vt2)}
                    v_lshl_add_u32 {v(AD+u)}, {v(AD+u)}, 4, {v(vt0)}
                    v_mad_u32_u24 {v(AD+u)}, {v(vt2)}, {s(s_t2)}, {v(AD+u)}''')
                if cg == 1:
                    A(f'''v_bfe_u32 {v(vt0)}, {v(vln)}, 2, 3
                    v_mul_u32_u24 {v(vt0)}, {64*1280}, {v(vt0)}
                    v_and_b32 {v(vt2)}, 3, {v(vln)}
                    v_mul_u32_u24 {v(vt2)}, 320, {v(vt2)}
                    v_add_u32 {v(vt0)}, {v(vt0)}, {v(vt2)}
                    v_lshrrev_b32 {v(vt2)}, 5, {v(vln)}
                    v_lshl_add_u32 {v(vt0)}, {v(vt2)}, 4, {v(vt0)}
                    s_mov_b32 exec_lo, 0
                    v_mov_b32 {v(vones)}, 0
                    v_mov_b32 {v(vones+1)}, 0
                    v_mov_b32 {v(vones+2)}, 0
                    v_mov_b32 {v(vones+3)}, 0
                    s_mov_b32 exec_lo, -1
                    buffer_store_dwordx4 {v(vones,4)}, {v(vt0)}, {s(sWS,4)}, {s(s_t)} offen offset:288 {STF}''')
                A('s_waitcnt lgkmcnt(0)')
                for u in range(nm):
                    p = P + 4*(u & 1)
                    for nt in range(2):
                        for j in range(4):
                            a = ACC+8*u+4*nt+j
                            A(f'v_fma_f32 {v(a)}, -{v(MEAN+4*nt+j)}, {v(CS+u)}, {v(a)}')
                            A(f'v_mul_f32 {v(a)}, {v(R+4*nt+j)}, {v(a)}')
                        for jj in range(2):
                            a = ACC+8*u+4*nt+2*jj
                            A(f'v_cvt_pk_bf16_f32 {v(p+2*nt+jj)}, {v(a)}, {v(a+1)}')
                    A(f'''s_nop 1
                    v_permlane32_swap_b32 {v(p)}, {v(p+2)}
                    v_permlane32_swap_b32 {v(p+1)}, {v(p+3)}
                    buffer_store_dwordx4 {v(p,4)}, {v(AD+u)}, {s(sWS,4)}, {s(s_t)} offen {STF}''')
                A(f's_branch {bar_job}')
    t = E; acc = E+1
    A(f'''{bar_job}:
    s_cmp_ge_u32 {s(s_w)}, 3
    s_cbranch_scc1 {done}
    s_waitcnt vmcnt(0)
    v_mov_b32 {v(acc)}, 0''')
    for i in range(4): A(f'v_mov_b32 {v(t+8+i)}, {v(vbar+4+i)}')
    for i in range(8):
        A(f'''v_lshlrev_b32 {v(t)}, 16, {v(vbar+i)}
        v_and_b32 {v(vbar+i)}, 0xffff0000, {v(vbar+i)}
        v_add_f32 {v(acc)}, {v(acc)}, {v(t)}
        v_add_f32 {v(acc)}, {v(acc)}, {v(vbar+i)}''')
    for d in ('quad_perm:[1,0,3,2]', 'quad_perm:[2,3,0,1]', 'row_half_mirror', 'row_mirror'):
        A(f's_nop 1\nv_add_f32_dpp {v(acc)}, {v(acc)}, {v(acc)} {d} row_mask:0xf bank_mask:0xf')
    for sw in ('v_permlane16_swap_b32', 'v_permlane32_swap_b32'):
        A(f'''v_mov_b32 {v(t)}, {v(acc)}
        s_nop 1
        {sw} {v(acc)}, {v(t)}
        v_add_f32 {v(acc)}, {v(acc)}, {v(t)}''')
    A(f'''v_mul_f32 {v(acc)}, {f32(1.0/D)}, {v(acc)}
    v_cvt_pk_bf16_f32 {v(t)}, {v(acc)}, {v(acc)}
    v_and_b32 {v(t+2)}, 0xffff0000, {v(t)}
    v_sub_f32 {v(t+2)}, {v(acc)}, {v(t+2)}
    v_cvt_pk_bf16_f32 {v(t+4)}, {v(acc)}, {v(t+2)}
    s_lshl_b32 {s(s_t)}, {s(s_t2+2)}, 5
    s_add_u32 {s(s_t)}, {s(s_t)}, {XIMG}
    v_mov_b32 {v(t+5)}, 0
    v_mov_b32 {v(t+6)}, 0
    v_mov_b32 {v(t+7)}, 0
    v_mul_u32_u24 {v(t+3)}, 18432, {v(vln)}
    s_mov_b64 exec, 0xff
    buffer_store_dwordx4 {v(t+8,4)}, {v(t+3)}, {s(sWS,4)}, {s(s_t)} offen
    buffer_store_dwordx4 {v(t+4,4)}, {v(t+3)}, {s(sWS,4)}, {s(s_t)} offen offset:16
    {done}:''')
    stamp(A, 6)
    if STAMPS: A('s_waitcnt vmcnt(0)')
    stamp(A, 7)
    stamp_flush(A, STAMP, 2)
    A(f'{done2}:\ns_endpgm')
    return NV
```

```python
import sys
sys.path.insert(0, 'work')
from asmlib import *
from layout import *
import k1, att, mlp, k3, red

HEADER = open('parallel_sum__softmax_full_mha__mixer_s_mlp__prompt.s.ref').read().split('; Override launch')[0]

def build(stages):
    A = Asm(); launches = []; descs = []
    A('.amdgcn_target "amdgcn-amd-amdhsa--gfx950"')
    A('.text'); A('.p2align 8'); A('code_start:')
    for st in stages:
        g = st(A)
        launches += g['launch']; descs += g['desc']
    A('.text'); A('code_end:')
    A('.fill 64, 4, 0xbf800000')
    hdr = HEADER + ''.join(f'; @launch kernel={k} grid=({g},1,1) block=({b},1,1) lds={l}\n' for k, g, b, l in launches)
    return hdr + A.text() + ''.join(descs)

def st_k1(A):
    DBGHOOK[0] = lambda A, k: dbg_stamp(A, 0, {0: 0, 2: 1, 4: 2, 7: 3}[k], 200) if k in (0, 2, 4, 7) else None
    nv = k1.gen_k1(A, 'proj_kernel', 'code_start', 'code_end')
    return dict(launch=[('proj_kernel', 256, 512, k1.K1_LDS)], desc=[kernel_desc('proj_kernel', nv)])

def guard(A, n):
    go = A.label('go')
    A(f's_cmp_lt_u32 s2, {n}\ns_cbranch_scc1 {go}\ns_endpgm\n{go}:')

import os
def weight_prefetch(A, when):
    vo3, vo4, vd = 160, 163, 164
    if when == 'setup':
        A(f'''s_load_dwordx4 s[48:51], s[0:1], {ARG['w3']}
        s_lshr_b32 s60, s3, 3
        s_lshl_b32 s60, s60, 2
        s_add_u32 s60, s60, s20
        s_mul_i32 s60, s60, 384
        v_add_u32 v{vo4}, s60, v1
        s_and_b32 s60, s3, 1
        s_lshl_b32 s60, s60, 2
        s_bfe_u32 s61, s3, 0x20001
        s_add_u32 s60, s60, s61
        s_mul_i32 s61, s60, 1152
        s_mul_i32 s62, s60, {576*1152}''')
        A(f'''s_waitcnt lgkmcnt(0)
        s_mov_b32 s52, s50
        s_mov_b32 s53, s51
        s_mov_b32 s50, {D*F*2}
        s_mov_b32 s51, 0x20000
        s_add_u32 s54, s62, {576*1152}
        s_mov_b32 s55, 0x20000
        s_mov_b32 s56, 58255''')
    elif when == 'loop':
        l4, le = A.label('pf4'), A.label('pfe')
        r = [f's_cmp_ge_u32 s29, 4', f's_cbranch_scc1 {le}', 's_cmp_ge_u32 s29, 2', f's_cbranch_scc1 {l4}']
        for n in range(3):
            r += [f'v_mul_u32_u24 v{vo3}, s56, v{vo4}', f'v_lshrrev_b32 v{vo3}, 22, v{vo3}', f'v_mul_u32_u24 v{vo3}, {9216-1152}, v{vo3}',
                  f'v_lshl_add_u32 v{vo3}, v{vo4}, 4, v{vo3}', f'buffer_load_dwordx4 v[{vd}:{vd+3}], v{vo3}, s[48:51], s61 offen', f'v_add_u32 v{vo4}, 64, v{vo4}']
        r += [f's_branch {le}', f'{l4}:']
        for n in range(3):
            r += [f'v_subrev_u32 v{vo4}, 64, v{vo4}', f'v_lshlrev_b32 v{vo3}, 4, v{vo4}', f'buffer_load_dwordx4 v[{vd}:{vd+3}], v{vo3}, s[52:55], s62 offen']
        return r + [f'{le}:']

def st_main2(A): return st_main(A, False)
def st_main(A, fused=True):
    li = 1
    kernel_begin(A, 'main_kernel'); guard(A, 512)
    lm = A.label('mlprole')
    pa = int(os.environ.get('PA', 2)); pm = int(os.environ.get('PM', 3))
    A(f's_and_b32 s3, s2, 255\ns_cmp_ge_u32 s2, 256\ns_cbranch_scc1 {lm}')
    if 'A' in mlp.ABL: A('s_endpgm')
    DBGHOOK[0] = lambda A, k: dbg_stamp(A, 1, {0: 4, 2: 5, 7: 6}[k], 100) if k in (0, 2, 7) else None
    att.gen_att(A, 3, prio=pa, li=li, prefetch=weight_prefetch, red=red.gen_red(A, 3, li) if fused else None)
    A('.p2align 6'); A(f'{lm}:')
    DBGHOOK[0] = lambda A, k: dbg_stamp(A, 1, {2: 7, 4: 8, 7: 10}[k], 356) if k in (2, 4, 7) else None
    stamp(A, 0)
    if pm: A(f's_setprio {pm}')
    mlp.prologue(A, 3)
    mlp.gen_w2(A)
    mlp.gen_main(A, 'sc1', li, fused)
    return dict(launch=[('main_kernel', 512, 256, mlp.MLP_LDS)], desc=[kernel_desc('main_kernel', 256)])

def st_k3(A):
    DBGHOOK[0] = lambda A, k: dbg_stamp(A, 2, {0: 11, 2: 12, 5: 13}[k], 100) if k in (0, 2, 5) else None
    k3.gen_k3(A, 'final_kernel', li=2)
    return dict(launch=[('final_kernel', k3.K3_GRID, 320, k3.K3_LDS)], desc=[kernel_desc('final_kernel', k3.K3_NV)])

def st_nop(A, n=[0]):
    n[0] += 1
    name = f'nop{n[0]}_kernel'
    kernel_begin(A, name); A('s_endpgm')
    return dict(launch=[(name, 256, 64, 0)], desc=[kernel_desc(name, 8)])

def st_touch(A):
    name = 'touch_kernel'
    kernel_begin(A, name); guard(A, 256)
    A(f'''s_load_dwordx16 s[4:19], s[0:1], 0
    s_load_dwordx2 s[20:21], s[0:1], 64
    s_load_dwordx2 s[24:25], s[0:1], 80
    s_lshr_b32 s3, s2, 3
    s_lshl_b32 s3, s3, 6
    v_add_u32 v1, s3, v0
    v_lshlrev_b32 v2, {os.environ.get('TS', 12)}, v1
    v_lshlrev_b32 v3, 15, v1
    s_waitcnt lgkmcnt(0)''')
    sizes = [S*D*2, D*3*D*2, D*D*2, 0, D*D*2, D*D*2, D*F*2, D*F*2, S*D*2]
    for i, n in enumerate(sizes):
        if n: A(f's_mov_b32 s28, s{4+2*i}\ns_mov_b32 s29, s{5+2*i}\ns_mov_b32 s30, {n}\ns_mov_b32 s31, 0x20000\nbuffer_load_dword v{4+i}, v2, s[28:31], 0 offen')
    A(f's_mov_b32 s26, {WS_END}\ns_mov_b32 s27, 0x20000\nbuffer_load_dword v16, v3, s[24:27], 0 offen\ns_waitcnt vmcnt(0)\ns_endpgm')
    return dict(launch=[(name, 256, 64, 0)], desc=[kernel_desc(name, 24)])

if __name__ == '__main__':
    out = sys.argv[1]
    open(out, 'w').write(build([globals()['st_'+n] for n in sys.argv[2:]]))
```

```python
from asmlib import *
from layout import *
from mlp import flag_store

import os
MODE = os.environ.get('AMODE', 'base')
SLOTA = 22528
L_FLAG = 2*SLOTA
ATT_LDS = L_FLAG + 64
ATT_NV = 160

def gen_att(A, s_id, prio=None, inline0=False, li=1, prefetch=None):
    sWS = 12
    s_w, s_head, s_qb, s_off, s_ko, s_vo, s_m, s_t, s_t2, s_cnt, s_cur, s_fb, s_k0, s_v0 = 20,21,22,23,24,25,26,27,28,29,30,31,32,33
    vln, vDs, vKa, vKr, vVa, vt0, vt1, vt2, vQo = 1,2,3,4,5,6,7,8,9
    vK0, vKr0, vV0, vInf = 10, 11, 60, 61
    QM = [12, 16]; QR = [20, 22]; KM = [24, 28]; KR = [32, 34]; V = [[36, 40], [44, 48]]; P = 52
    Sx = [64, 80]; O = [96, 112]; NM = [128, 144]
    stamp(A, 0); hold_begin(A, 'main')
    A('s_setprio 3')
    A(f'''s_load_dwordx2 s[12:13], s[0:1], {ARG['ws']}
    v_lshrrev_b32 {v(vt0)}, 6, v0
    v_and_b32 {v(vln)}, 63, v0
    v_readfirstlane_b32 {s(s_w)}, {v(vt0)}
    s_and_b32 {s(s_head)}, {s(s_id)}, 7
    s_lshl_b32 {s(s_head)}, {s(s_head)}, 2
    s_bfe_u32 {s(s_t)}, {s(s_id)}, 0x20003
    s_add_u32 {s(s_head)}, {s(s_head)}, {s(s_t)}
    s_lshr_b32 {s(s_qb)}, {s(s_id)}, 5
    s_mul_i32 {s(s_t)}, {s(s_head)}, 18
    s_and_b32 {s(s_off)}, {s(s_t)}, 7
    s_lshr_b32 {s(s_t)}, {s(s_t)}, 3
    s_lshl_b32 {s(s_t)}, {s(s_t)}, 15
    s_add_u32 {s(s_k0)}, {s(s_t)}, {TK}
    s_mul_i32 {s(s_v0)}, {s(s_head)}, {64*1280}
    s_add_u32 {s(s_v0)}, {s(s_v0)}, {VB}
    v_lshlrev_b32 {v(vDs)}, 4, v0
    s_lshl_b32 {s(s_m)}, {s(s_w)}, 10
    s_mov_b32 s14, {WS_BYTES}
    s_mov_b32 s15, 0x20000
    s_mov_b32 {s(s_fb)}, 0''')
    def dma(sbase):
        skip = A.label('v3')
        r = []
        for gi in range(3):
            r += [f's_add_u32 m0, {s(sbase)}, {gi*4096}',
                  f's_add_u32 {s(s_t2)}, {s(s_ko)}, {gi*GP}',
                  f'buffer_load_dwordx4 {v(vDs)}, {s(sWS,4)}, {s(s_t2)} offen lds']
        for i in range(2):
            r += [f's_add_u32 m0, {s(sbase)}, {12288+i*4096}',
                  f's_add_u32 {s(s_t2)}, {s(s_vo)}, {i*4096}',
                  f'buffer_load_dwordx4 {v(vDs)}, {s(sWS,4)}, {s(s_t2)} offen lds']
        r += [f's_cmp_ge_u32 {s(s_w)}, 2', f's_cbranch_scc1 {skip}',
              f's_add_u32 m0, {s(sbase)}, {12288+8192}',
              f's_add_u32 {s(s_t2)}, {s(s_vo)}, 8192',
              f'buffer_load_dwordx4 {v(vDs)}, {s(sWS,4)}, {s(s_t2)} offen lds',
              f'{skip}:',
              f's_add_u32 {s(s_ko)}, {s(s_ko)}, 4096',
              f's_add_u32 {s(s_vo)}, {s(s_vo)}, 10240']
        return r
    A(f'''v_lshrrev_b32 {v(vt0)}, 5, {v(vln)}
    v_and_b32 {v(vt1)}, 31, {v(vln)}
    v_lshlrev_b32 {v(vQo)}, 15, {v(vt0)}
    v_lshl_add_u32 {v(vQo)}, {v(vt1)}, 4, {v(vQo)}
    v_lshlrev_b32 {v(vt2)}, 4, {v(vt1)}
    v_lshl_add_u32 {v(vt2)}, {v(vt0)}, 3, {v(vt2)}
    s_lshl_b32 {s(s_t)}, {s(s_qb)}, 2
    s_add_u32 {s(s_t)}, {s(s_t)}, {s(s_w)}
    s_lshl_b32 {s(s_t)}, {s(s_t)}, 10
    s_add_u32 {s(s_t)}, {s(s_t)}, {s(s_k0)}
    s_sub_u32 {s(s_t)}, {s(s_t)}, {TK-TQ}
    s_mov_b32 {s(s_ko)}, {s(s_k0)}
    s_mov_b32 {s(s_vo)}, {s(s_v0)}
    s_waitcnt lgkmcnt(0)''')
    for ln in dma(s_m): A(ln)
    A(f'''buffer_load_dwordx4 {v(QM[0],4)}, {v(vQo)}, {s(sWS,4)}, {s(s_t)} offen
    buffer_load_dwordx4 {v(QM[1],4)}, {v(vQo)}, {s(sWS,4)}, {s(s_t)} offen offset:512
    s_add_u32 {s(s_t)}, {s(s_t)}, {2*GP}
    v_add_u32 {v(vKr0)}, 8192, {v(vt2)}
    buffer_load_dwordx2 {v(QR[0],2)}, {v(vt2)}, {s(sWS,4)}, {s(s_t)} offen
    buffer_load_dwordx2 {v(QR[1],2)}, {v(vt2)}, {s(sWS,4)}, {s(s_t)} offen offset:512
    s_setprio {prio}
    v_lshlrev_b32 {v(vK0)}, 12, {v(vt0)}
    v_lshl_add_u32 {v(vK0)}, {v(vt1)}, 4, {v(vK0)}
    v_min_u32 {v(vt2)}, 19, {v(vt1)}
    v_mul_u32_u24 {v(vV0)}, 320, {v(vt0)}
    v_add_u32 {v(vV0)}, 12288, {v(vV0)}
    v_lshl_add_u32 {v(vV0)}, {v(vt2)}, 4, {v(vV0)}
    v_mov_b32 {v(vInf)}, 0x7f800000
    v_mov_b32 {v(vt2)}, {L_FLAG}
    v_mov_b32 {v(vt1)}, 0
    ds_write_b32 {v(vt2)}, {v(vt1)}''')
    for q in range(2):
        for i in range(16): A(f'v_mov_b32 {v(NM[q]+i)}, 0')
    if prefetch: prefetch(A, 'setup')
    A(f'''v_lshlrev_b32 {v(vt1)}, 3, {v(vt0)}
    v_lshlrev_b32 {v(vt0)}, 2, {v(vt0)}
    s_waitcnt vmcnt(0)''')
    for d in range(4):
        A(f'''v_add_u32 {v(vt2)}, {2*d}, {v(vt1)}
        v_cmp_le_u32 vcc, {s(s_off)}, {v(vt2)}
        s_nop 1''')
        for q in range(2): A(f'v_cndmask_b32 {v(QM[q]+d)}, 0, {v(QM[q]+d)}, vcc')
    for d in range(2):
        A(f'''v_add_u32 {v(vt2)}, {2*d}, {v(vt0)}
        v_cmp_ge_u32 vcc, {s(s_off)}, {v(vt2)}
        s_nop 1''')
        for q in range(2): A(f'v_cndmask_b32 {v(QR[q]+d)}, 0, {v(QR[q]+d)}, vcc')

    def rdK(kt, buf):
        return [f'ds_read_b128 {v(KM[buf],4)}, {v(vKa)} offset:{kt*512}', f'ds_read_b64 {v(KR[buf],2)}, {v(vKr)} offset:{kt*512}']
    def rdV(kt, buf):
        return [f'ds_read_b128 {v(V[buf][0],4)}, {v(vVa)} offset:{kt*1280}', f'ds_read_b128 {v(V[buf][1],4)}, {v(vVa)} offset:{kt*1280+640}']
    def qk(kb, q, zero=False):
        c = '0' if (zero or inline0) else v(NM[q],16)
        return [f'v_mfma_f32_32x32x8_bf16 {v(Sx[q],16)}, {v(KR[kb],2)}, {v(QR[q],2)}, {c}',
                f'v_mfma_f32_32x32x16_bf16 {v(Sx[q],16)}, {v(KM[kb],4)}, {v(QM[q],4)}, {v(Sx[q],16)}']
    def pv(vb, mf, q):
        return f'v_mfma_f32_32x32x16_bf16 {v(O[q],16)}, {v(V[vb][mf],4)}, {v(P+4*mf,4)}, {v(O[q],16)}'

    start, loop, nodma = A.label('astart'), A.label('aloop'), A.label('nodma')
    A(f'''{start}:
    s_waitcnt lgkmcnt(0)
    s_barrier
    s_add_u32 {s(s_t)}, {s(s_m)}, {SLOTA}''')
    for ln in dma(s_t): A(ln)
    A(f'''v_mov_b32 {v(vKa)}, {v(vK0)}
    v_mov_b32 {v(vKr)}, {v(vKr0)}
    v_mov_b32 {v(vVa)}, {v(vV0)}''')
    for ln in rdK(0, 0) + rdV(0, 0) + rdK(1, 1): A(ln)
    for q in range(2):
        for i in range(16): A(f'v_mov_b32 {v(O[q]+i)}, 0')
    for i in range(8):
        A(f'v_mov_b32 {v(P+i)}, 0'); A(f'v_mov_b32 {v(V[1][0]+i)}, 0')
    A(f'''s_mov_b32 {s(s_cnt)}, 0
    s_mov_b32 {s(s_cur)}, {SLOTA}
    s_waitcnt lgkmcnt(4)''')
    for ln in qk(0, 0): A(ln)
    stamp(A, 1)
    A('s_nop 7\ns_nop 3')
    A('.p2align 6')
    A(f'{loop}:')
    for kt in range(8):
        for q in range(2):
            sr = Sx[q]
            e = [f'v_exp_f32 {v(sr+i)}, {v(sr+i)}' for i in range(16)]
            c = [f'v_cvt_pk_bf16_f32 {v(P+i)}, {v(sr+2*i)}, {v(sr+2*i+1)}' for i in range(8)]
            pre, ra, rb, w2, w4, post = [], [], [], [], [], []
            if q == 0:
                m1 = pv((kt-1) & 1, 1, 1); m2, m3 = qk(kt & 1, 1); m4 = pv(kt & 1, 0, 0)
                w4 = ['s_waitcnt lgkmcnt(4)']
                if kt == 7: ra.append(f'v_add_u32 {v(vVa)}, {s(s_cur)}, {v(vVa)}')
                ra += rdV((kt+1) % 8, (kt+1) & 1)
            else:
                m1 = pv(kt & 1, 1, 0); m2, m3 = qk((kt+1) & 1, 0); m4 = pv(kt & 1, 0, 1)
                w2 = ['s_waitcnt lgkmcnt(2)']
                if kt == 6:
                    pre = ['s_waitcnt vmcnt(0) lgkmcnt(0)', 's_barrier']
                    w2 = []
                    rb += [f'v_add_u32 {v(vKa)}, {s(s_cur)}, {v(vKa)}', f'v_add_u32 {v(vKr)}, {s(s_cur)}, {v(vKr)}']
                    post = [f's_cmp_ge_u32 {s(s_cnt)}, 6', f's_cbranch_scc1 {nodma}',
                            f's_and_b32 {s(s_t)}, {s(s_cnt)}, 1', f's_mul_i32 {s(s_t)}, {s(s_t)}, {SLOTA}',
                            f's_add_u32 {s(s_t)}, {s(s_t)}, {s(s_m)}'] + dma(s_t) + (prefetch(A, 'loop') if prefetch else []) + [f'{nodma}:']
                rb += rdK((kt+2) % 8, kt & 1)
                if kt == 7:
                    rb += [f's_sub_u32 {s(s_cur)}, 0, {s(s_cur)}', f's_add_u32 {s(s_cnt)}, {s(s_cnt)}, 1', f's_cmp_lt_u32 {s(s_cnt)}, 8']
                    post = [f's_cbranch_scc1 {loop}']
                    if STAMPS:
                        post = [f's_memtime s[44:45]', 's_waitcnt lgkmcnt(0)', 's_sub_u32 s44, s44, s64', f'v_mov_b32 v170, s44', f'v_lshrrev_b32 v171, 6, v0', 's_lshl_b32 s45, s2, 3',
                                'v_add_u32 v171, s45, v171', 'v_lshlrev_b32 v171, 6, v171', f's_lshl_b32 s45, {s(s_cnt)}, 3', f's_add_u32 s45, s45, {STAMP + 3*512*8*64 - 8}',
                                'buffer_store_dword v170, v171, s[12:15], s45 offen', f's_cmp_lt_u32 {s(s_cnt)}, 8'] + post
            hi, lo = ['s_setprio 3'], [f's_setprio {prio}']
            if MODE == 'base':
                seq = pre + [e[0], e[1], e[2], m1] + ra + [c[0], e[3], e[4], c[1], e[5]] + w2 + [m2, e[6], c[2], e[7], e[8], c[3], e[9], m3] + rb + \
                      [e[10], c[4], e[11], e[12], c[5]] + w4 + [m4, e[13], e[14], e[15], c[6], c[7]] + post
            elif MODE == 'raise4':
                seq = pre + [e[0], e[1], e[2]] + hi + [m1] + lo + ra + [c[0], e[3], e[4], c[1], e[5]] + w2 + hi + [m2] + lo + [e[6], c[2], e[7], e[8], c[3], e[9]] + hi + [m3] + lo + rb + \
                      [e[10], c[4], e[11], e[12], c[5]] + w4 + hi + [m4] + lo + [e[13], e[14], e[15], c[6], c[7]] + post
            else:
                pq, pk = (1, (kt-1) & 1) if q == 0 else (0, kt & 1)
                if MODE == 'pair0': hi, lo = [], []
                seq = pre + [e[0], e[1], e[2]] + (['s_waitcnt lgkmcnt(4)'] if q == 1 and kt != 6 else []) + hi + [pv(pk, 0, pq), pv(pk, 1, pq)] + lo + ra + \
                      [c[0], e[3], e[4], c[1], e[5], e[6], c[2], e[7], e[8], c[3]] + w2 + hi + [m2, m3] + lo + rb + \
                      [e[9], e[10], c[4], e[11], e[12], c[5], e[13], e[14], e[15], c[6], c[7]] + (['s_nop 0'] if not (rb or lo) else []) + post
            for ln in seq: A(ln)
    A('s_nop 1')
    if MODE.startswith('pair'): A(pv(1, 0, 1))
    A(pv(1, 1, 1))
    stamp(A, 2)
    A('s_setprio 3')
    Lq = [vKa, vKr]; RM = [vVa, vt2]
    A(f'''s_lshl_b32 {s(s_t)}, {s(s_qb)}, 2
    s_add_u32 {s(s_t)}, {s(s_t)}, {s(s_w)}
    s_lshl_b32 {s(s_t)}, {s(s_t)}, 10
    s_lshl_b32 {s(s_t2)}, {s(s_head)}, 16
    s_add_u32 {s(s_t2)}, {s(s_t2)}, {s(s_t)}
    s_add_u32 {s(s_t2)}, {s(s_t2)}, {TO}
    s_lshr_b32 {s(s_ko)}, {s(s_head)}, 2
    s_lshl_b32 {s(s_ko)}, {s(s_ko)}, 15
    s_add_u32 {s(s_t)}, {s(s_t)}, {s(s_ko)}
    s_and_b32 {s(s_ko)}, {s(s_head)}, 3
    s_lshl_b32 {s(s_ko)}, {s(s_ko)}, 2
    s_add_u32 {s(s_t)}, {s(s_t)}, {s(s_ko)}
    s_add_u32 {s(s_t)}, {s(s_t)}, {TO + 64*GP}
    s_mov_b64 {s(36,2)}, 0
    s_waitcnt lgkmcnt(0)''')
    for q in range(2):
        o = O[q]; l = Lq[q]
        A(f'''v_mov_b32 {v(l)}, {v(o+10)}
        v_add_f32 {v(vt0)}, abs({v(o)}), abs({v(o+1)})
        v_add_f32 {v(vt1)}, abs({v(o+2)}), abs({v(o+3)})
        v_permlane32_swap_b32 {v(l)}, {v(o+10)}''')
        for i in range(4, 10, 2):
            A(f'v_add_f32 {v(vt0)}, {v(vt0)}, abs({v(o+i)})')
            A(f'v_add_f32 {v(vt1)}, {v(vt1)}, abs({v(o+i+1)})')
        A(f'''v_rcp_f32 {v(o+11)}, {v(l)}
        v_add_f32 {v(vt0)}, {v(vt0)}, {v(vt1)}
        v_cmp_nlt_f32 vcc, {v(vt0)}, {v(vInf)}
        s_or_b64 {s(36,2)}, {s(36,2)}, vcc
        v_cmp_nle_f32 vcc, {f32(2.0**-90)}, {v(l)}
        s_or_b64 {s(36,2)}, {s(36,2)}, vcc
        v_cmp_nge_f32 vcc, {f32(2.0**100)}, {v(l)}
        s_or_b64 {s(36,2)}, {s(36,2)}, vcc''')
        for i in range(10): A(f'v_mul_f32 {v(o+i)}, {v(o+11)}, {v(o+i)}')
        for i in range(4): A(f'v_cvt_pk_bf16_f32 {v(P+4*q+i)}, {v(o+2*i)}, {v(o+2*i+1)}')
        A(f'v_cvt_pk_bf16_f32 {v(RM[q])}, {v(o+8)}, {v(o+9)}')
        A(f'buffer_store_dwordx4 {v(P+4*q,4)}, {v(vQo)}, {s(sWS,4)}, {s(s_t2)} offen offset:{512*q} sc1')
    fin2 = A.label('afin2')
    fin, okw, mloop, mkt = A.label('afin'), A.label('okw'), A.label('mloop'), A.label('mkt')
    A(f'''v_lshlrev_b32 {v(vt0)}, 4, {v(vln)}
    v_permlane32_swap_b32 {v(RM[0])}, {v(RM[1])}
    buffer_store_dword {v(RM[0])}, {v(vt0)}, {s(sWS,4)}, {s(s_t)} offen sc1
    s_cmp_lg_u32 {s(s_fb)}, 0
    s_cbranch_scc1 {fin}
    v_mov_b32 {v(vt1)}, {L_FLAG}
    s_cmp_eq_u64 {s(36,2)}, 0
    s_cbranch_scc1 {okw}
    v_mov_b32 {v(vt0)}, 1
    ds_write_b32 {v(vt1)}, {v(vt0)}
    {okw}:
    s_waitcnt lgkmcnt(0)
    s_barrier
    ds_read_b32 {v(vt0)}, {v(vt1)}
    s_waitcnt lgkmcnt(0)
    v_readfirstlane_b32 {s(s_fb)}, {v(vt0)}
    s_nop 3
    s_cmp_eq_u32 {s(s_fb)}, 0
    s_cbranch_scc1 {fin}''')
    A(f'''s_mov_b32 {s(s_ko)}, {s(s_k0)}
    s_mov_b32 {s(s_vo)}, {s(s_v0)}
    s_mov_b32 {s(s_cnt)}, 0
    v_mov_b32 {v(NM[0])}, 0xff800000
    v_mov_b32 {v(NM[1])}, 0xff800000
    {mloop}:
    s_waitcnt vmcnt(0)
    s_barrier''')
    for ln in dma(s_m): A(ln)
    A(f'''v_mov_b32 {v(vKa)}, {v(vK0)}
    v_mov_b32 {v(vKr)}, {v(vKr0)}
    s_mov_b32 {s(s_cur)}, 0
    s_waitcnt vmcnt(0)
    s_barrier
    {mkt}:''')
    for ln in rdK(0, 0): A(ln)
    A(f'''v_add_u32 {v(vKa)}, 512, {v(vKa)}
    v_add_u32 {v(vKr)}, 512, {v(vKr)}
    s_waitcnt lgkmcnt(0)''')
    for q in range(2):
        for ln in qk(0, q, zero=True): A(ln)
    A('s_nop 15')
    for q in range(2):
        for i in range(0, 16, 2): A(f'v_max3_f32 {v(NM[q])}, {v(Sx[q]+i)}, {v(Sx[q]+i+1)}, {v(NM[q])}')
    A(f'''s_add_u32 {s(s_cur)}, {s(s_cur)}, 1
    s_cmp_lt_u32 {s(s_cur)}, 8
    s_cbranch_scc1 {mkt}
    s_add_u32 {s(s_cnt)}, {s(s_cnt)}, 1
    s_cmp_lt_u32 {s(s_cnt)}, 8
    s_cbranch_scc1 {mloop}''')
    for q in range(2):
        A(f'''v_mov_b32 {v(vt0)}, {v(NM[q])}
        s_nop 1
        v_permlane32_swap_b32 {v(vt0)}, {v(NM[q])}
        v_max_f32 {v(vt0)}, {v(vt0)}, {v(NM[q])}''')
        for i in range(16): A(f'v_sub_f32 {v(NM[q]+i)}, 0, {v(vt0)}')
    A(f'''s_mov_b32 {s(s_ko)}, {s(s_k0)}
    s_mov_b32 {s(s_vo)}, {s(s_v0)}
    s_barrier''')
    for ln in dma(s_m): A(ln)
    A(f'''s_waitcnt vmcnt(0)
    s_branch {start}
    {fin}:
    s_lshl_b32 {s(s_t)}, {s(s_qb)}, 2
    s_add_u32 {s(s_t)}, {s(s_t)}, {s(s_w)}
    s_lshl_b32 {s(s_t)}, {s(s_t)}, 5
    s_add_u32 {s(s_t)}, {s(s_t)}, {s(s_head)}
    s_lshl_b32 {s(s_t)}, {s(s_t)}, 2
    s_add_u32 {s(s_t)}, {s(s_t)}, {OF}
    s_waitcnt vmcnt(0)''')
    flag_store(A, s_t, vt0, vt1)
    hold_end(A, 'main', 0)
    stamp(A, 3)
    stamp_flush(A, STAMP + li*512*8*64, 2)
    A('s_endpgm')
```

```python
import math
from asmlib import *
from layout import *

import os
STF = os.environ.get('K1ST', 'sc1')
CPW = int(os.environ.get('CPW', 1))
SLOT = 17408; NSLOT = 9
L_STM = SLOT*NSLOT; L_STR = L_STM + 512; L_CS = L_STR + 512
K1_LDS = L_CS + 640
QS = (DH ** -0.5) * math.log2(math.e)
C1 = -2.0*math.sqrt(2.0/math.pi)*math.log2(math.e); C2 = C1*0.044715

def gelu_block(A, regs, tmp, c1, c2, ir):
    n = len(tmp)
    for b in range(0, len(regs), n):
        rs = regs[b:b+n]
        for r, t in zip(rs, tmp): A(f'v_mul_f32 {v(t)}, {v(r)}, {v(r)}')
        for r, t in zip(rs, tmp): A(f'v_fma_f32 {v(t)}, {v(t)}, {v(c2)}, {v(c1)}')
        for r, t in zip(rs, tmp): A(f'v_mul_f32 {v(t)}, {v(t)}, {v(r)}')
        for r, t in zip(rs, tmp): A(f'v_exp_f32 {v(t)}, {v(t)}')
        for r, t in zip(rs, tmp): A(f'v_fma_f32 {v(t)}, {v(t)}, {v(ir)}, {v(ir)}')
        for r, t in zip(rs, tmp): A(f'v_rcp_f32 {v(t)}, {v(t)}')
        for r, t in zip(rs, tmp): A(f'v_mul_f32 {v(r)}, {v(r)}, {v(t)}')

def code_prefetch(A, start, end, nwaves, s_w, s_i, stmp, vtmp, vdst, nparts=32):
    lab = A.label('pc')
    A(f's_getpc_b64 {s(stmp,2)}')
    A(f'{lab}:')
    A(f's_add_u32 {s(stmp)}, {s(stmp)}, {start}-{lab}')
    A(f's_addc_u32 {s(stmp+1)}, {s(stmp+1)}, (({start}-{lab})>>32)')
    A(f's_mul_i32 {s(stmp+2)}, {s(s_i)}, {nwaves}')
    A(f's_add_u32 {s(stmp+2)}, {s(stmp+2)}, {s(s_w)}')
    A(f's_lshl_b32 {s(stmp+2)}, {s(stmp+2)}, {8+CPW}')
    A(f'v_and_b32 {v(vtmp)}, 63, v0')
    A(f'v_lshlrev_b32 {v(vtmp)}, {2+CPW}, {v(vtmp)}')
    A(f'v_add_u32 {v(vtmp)}, {s(stmp+2)}, {v(vtmp)}')
    A(f'v_min_u32 {v(vtmp)}, {end}-{start}-8, {v(vtmp)}')
    A(f'global_load_dword {v(vdst)}, {v(vtmp)}, {s(stmp,2)}')

def gen_k1(A, name, code_start, code_end):
    sX, sW, sWS, sW2 = 4, 8, 12, 16
    s_w, s_tg, s_cg, s_rb, s_cb, s_pw, s_ox, s_ow, s_stepw, s_mx, s_mw, s_t = 20,21,22,23,24,25,26,27,28,29,30,31
    s_ex = 32; s_m1, s_m2, s_m3, s_md = 34, 36, 38, 40; s_t2 = 42; s_i = 46; s_cbl = 47; s_ob = 48; s_kd = 49; s_kc = 50; s_tx = 51; s_br = 52; s_m9 = 53
    vXs, vWs, vW9 = 1, 2, 3
    vXa, vWa, vCa = 4, 7, 10
    vln = 13; vt0, vt1, vt2 = 14, 15, 16
    vones = 20
    vbar = 24
    vpf = 19; vPx, vPw = 210, 211
    LEAD = int(os.environ.get('LEAD', 5)); W2PF = int(os.environ.get('W2PF', 16))
    FR = [32, 64]
    ACC = 96
    ACS = 136
    AC4 = 140
    AG = [140, 144]; AS = [148, 152]
    E = 156
    NV = 256 if DBGT else 220
    kernel_begin(A, name)
    done = A.label('done'); done2 = A.label('done2')
    stamp(A, 0); hold_begin(A, 'k1')
    A(f'''s_cmp_ge_u32 s2, 256
    s_cbranch_scc1 {done2}
    s_load_dwordx4 s[4:7], s[0:1], {ARG['x']}
    s_load_dwordx4 s[16:19], s[0:1], {ARG['w1']}
    s_load_dwordx2 s[12:13], s[0:1], {ARG['ws']}
    s_load_dwordx2 s[56:57], s[0:1], {ARG['wo']}
    v_lshrrev_b32 v1, 6, v0
    v_and_b32 {v(vln)}, 63, v0
    v_readfirstlane_b32 {s(s_w)}, v1
    s_lshr_b32 {s(s_i)}, s2, 3
    s_and_b32 {s(s_t)}, s2, 1
    s_lshl_b32 {s(s_t)}, {s(s_t)}, 3
    s_and_b32 {s(s_rb)}, {s(s_i)}, 7
    s_add_u32 {s(s_rb)}, {s(s_rb)}, {s(s_t)}
    s_bfe_u32 {s(s_t)}, s2, 0x20001
    s_lshl_b32 {s(s_t)}, {s(s_t)}, 2
    s_lshr_b32 {s(s_cbl)}, {s(s_i)}, 3
    s_add_u32 {s(s_cb)}, {s(s_cbl)}, {s(s_t)}
    s_and_b32 {s(s_tg)}, {s(s_w)}, 3
    s_lshr_b32 {s(s_cg)}, {s(s_w)}, 2''')
    A(f'''v_lshrrev_b32 {v(vt0)}, 2, {v(vln)}
    s_lshl_b32 {s(s_t)}, {s(s_rb)}, 3
    s_add_u32 {s(s_t)}, {s(s_t)}, {s(s_w)}
    s_lshl_b32 {s(s_t)}, {s(s_t)}, 4
    v_add_u32 {v(vt1)}, {s(s_t)}, {v(vt0)}
    v_mul_u32_u24 {v(vt1)}, 1152, {v(vt1)}
    v_lshrrev_b32 {v(vt0)}, 4, {v(vln)}
    v_and_b32 {v(vt0)}, 2, {v(vt0)}
    v_xor_b32 {v(vt0)}, {v(vt0)}, {v(vln)}
    v_and_b32 {v(vt0)}, 3, {v(vt0)}
    v_lshl_add_u32 {v(vXs)}, {v(vt0)}, 4, {v(vt1)}
    s_movk_i32 {s(s_pw)}, 3456
    s_cmp_ge_u32 {s(s_cb)}, 12
    s_cselect_b32 {s(s_pw)}, 1152, {s(s_pw)}
    s_cselect_b32 {s(s_t)}, {s(s_cbl)}, {s(s_cb)}
    s_mul_i32 {s(s_ob)}, {s(s_t)}, 288
    s_lshl_b32 {s(s_stepw)}, {s(s_pw)}, 5
    s_lshl_b32 {s(s_mx)}, {s(s_w)}, 10
    s_add_u32 {s(s_mw)}, {s(s_mx)}, 8192''')
    def wsrc(dst, qreg):
        A(f'''v_mul_u32_u24 {v(vt1)}, 3641, {v(qreg)}
        v_lshrrev_b32 {v(vt1)}, 16, {v(vt1)}
        v_mul_u32_u24 {v(vt2)}, 18, {v(vt1)}
        v_sub_u32 {v(vt2)}, {v(qreg)}, {v(vt2)}
        v_lshlrev_b32 {v(vt2)}, 4, {v(vt2)}
        v_add_u32 {v(vt2)}, {s(s_ob)}, {v(vt2)}
        v_lshrrev_b32 {v(dst)}, 1, {v(vt1)}
        v_xor_b32 {v(dst)}, {v(dst)}, {v(vt1)}
        v_and_b32 {v(dst)}, 4, {v(dst)}
        v_mul_u32_u24 {v(dst)}, 3, {v(dst)}
        v_xor_b32 {v(vt1)}, {v(dst)}, {v(vt1)}
        v_mad_u32_u24 {v(dst)}, {v(vt1)}, {s(s_pw)}, {v(vt2)}''')
    wsrc(vWs, 0)
    A(f'''s_and_b32 {s(s_kd)}, {s(s_i)}, 7
    s_lshl_b32 {s(s_kd)}, {s(s_kd)}, 1
    s_mul_i32 {s(s_t)}, {s(s_cbl)}, 9
    s_lshr_b32 {s(s_t)}, {s(s_t)}, 1
    s_add_u32 {s(s_kd)}, {s(s_kd)}, {s(s_t)}
    s_lshr_b32 {s(s_t)}, {s(s_cb)}, 2
    s_add_u32 {s(s_kd)}, {s(s_kd)}, {s(s_t)}
    s_sub_u32 {s(s_t)}, {s(s_kd)}, 18
    s_cselect_b32 {s(s_kd)}, {s(s_kd)}, {s(s_t)}
    s_lshl_b32 {s(s_ox)}, {s(s_kd)}, 6
    s_mul_i32 {s(s_ow)}, {s(s_kd)}, {s(s_stepw)}
    s_waitcnt lgkmcnt(0)
    s_cmp_ge_u32 {s(s_cb)}, 12
    s_cselect_b32 s8, s16, s6
    s_cselect_b32 s9, s17, s7
    s_mov_b32 s10, {D*3*D*2}
    s_cselect_b32 s10, {D*D*2}, s10
    s_mov_b32 s11, 0x20000
    s_mov_b32 s6, {S*D*2}
    s_mov_b32 s7, 0x20000
    s_mov_b32 s16, s18
    s_mov_b32 s17, s19
    s_mov_b32 s18, {D*D*2}
    s_mov_b32 s19, 0x20000
    s_mov_b32 s14, {WS_BYTES}
    s_mov_b32 s15, 0x20000
    s_nop 0''')
    def dma(step):
        base = (step % NSLOT)*SLOT
        return [f's_add_u32 m0, {s(s_mx)}, {base}',
                f's_nop 0',
                f'buffer_load_dwordx4 {v(vXs)}, {s(sX,4)}, {s(s_ox)} offen lds',
                f's_add_u32 m0, {s(s_mw)}, {base}',
                f's_add_u32 {s(s_ox)}, {s(s_ox)}, 64',
                f'buffer_load_dwordx4 {v(vWs)}, {s(sW,4)}, {s(s_ow)} offen lds',
                f's_add_u32 {s(s_ow)}, {s(s_ow)}, {s(s_stepw)}\ns_cmp_eq_u32 {s(s_ox)}, {18*64}\ns_cselect_b32 {s(s_ox)}, 0, {s(s_ox)}\ns_cselect_b32 {s(s_ow)}, 0, {s(s_ow)}']
    def dma9(step):
        return [f's_add_u32 {s(s_t)}, {s(s_tg)}, {step}\ns_min_u32 {s(s_t)}, {s(s_t)}, 17',
                f's_sub_u32 {s(s_m9)}, {s(s_t)}, 9\ns_cselect_b32 {s(s_m9)}, {s(s_t)}, {s(s_m9)}',
                f's_mul_i32 {s(s_m9)}, {s(s_m9)}, {SLOT}', f's_add_u32 {s(s_t)}, {s(s_t)}, {s(s_kd)}',
                f's_sub_u32 {s(s_kc)}, {s(s_t)}, 18\ns_cselect_b32 {s(s_t)}, {s(s_t)}, {s(s_kc)}',
                f's_add_u32 m0, {s(s_m9)}, 16384', f's_mul_i32 {s(s_t)}, {s(s_t)}, {s(s_stepw)}',
                f'buffer_load_dwordx4 {v(vW9)}, {s(sW,4)}, {s(s_t)} offen lds']
    for ln in dma(0): A(ln)
    n9 = A.label('n9')
    A(f'v_mov_b32 {v(vW9)}, 0\ns_cmp_eq_u32 {s(s_cg)}, 0\ns_cbranch_scc1 {n9}\nv_add_u32 {v(vt0)}, 512, {v(vln)}')
    wsrc(vW9, vt0)
    for ln in dma9(0): A(ln)
    A(f'{n9}:')
    for ln in dma(1): A(ln)
    code_prefetch(A, code_start, code_end, 8, s_w, s_i, s_t2, vt0, vpf)
    A(f'''s_mul_i32 {s(s_t)}, {s(s_rb)}, 12
    s_add_u32 {s(s_t)}, {s(s_t)}, {s(s_cb)}
    s_mul_i32 {s(s_t)}, {s(s_t)}, 3
    s_add_u32 {s(s_t)}, {s(s_t)}, {s(s_w)}
    s_mul_i32 {s(s_br)}, {s(s_t)}, 1152
    v_lshlrev_b32 {v(17)}, 4, {v(vln)}
    v_cmp_gt_u32 vcc, 8, {v(vln)}
    v_mov_b32 {v(vt2)}, 0x7fff0000
    s_nop 0
    v_cndmask_b32 {v(18)}, {v(vt2)}, {v(17)}, vcc''')
    A(f'''s_mov_b32 {s(s_t2+2)}, {s(s_t)}
    v_and_b32 {v(vt0)}, 15, {v(vln)}
    s_lshl_b32 {s(s_t)}, {s(s_tg)}, 5
    v_add_u32 {v(vt1)}, {s(s_t)}, {v(vt0)}
    v_lshlrev_b32 {v(vt1)}, 6, {v(vt1)}
    v_lshrrev_b32 {v(vt0)}, 2, {v(vln)}
    v_and_b32 {v(vt0)}, 2, {v(vt0)}
    v_lshrrev_b32 {v(vt2)}, 4, {v(vln)}
    v_xor_b32 {v(vt0)}, {v(vt0)}, {v(vt2)}
    v_lshl_add_u32 {v(vXa)}, {v(vt0)}, 4, {v(vt1)}
    v_lshrrev_b32 {v(vt0)}, 5, {v(vln)}
    v_lshlrev_b32 {v(vt0)}, 4, {v(vt0)}
    v_bfe_u32 {v(vt1)}, {v(vln)}, 2, 3
    v_add_u32 {v(vt0)}, {v(vt0)}, {v(vt1)}
    v_mul_u32_u24 {v(vt0)}, 288, {v(vt0)}
    v_and_b32 {v(vt1)}, 3, {v(vln)}
    v_lshl_add_u32 {v(vt0)}, {v(vt1)}, 3, {v(vt0)}
    s_mul_i32 {s(s_t)}, {s(s_cg)}, 160
    s_add_u32 {s(s_t)}, {s(s_t)}, 8192
    v_add_u32 {v(vWa)}, {s(s_t)}, {v(vt0)}
    s_lshl_b32 {s(s_t)}, {s(s_tg)}, 5
    v_add_u32 {v(vCa)}, {s(s_t)}, {v(vWa)}''')
    for b in (vXa, vWa, vCa):
        A(f'v_add_u32 {v(b+1)}, {3*SLOT}, {v(b)}')
        A(f'v_add_u32 {v(b+2)}, {6*SLOT}, {v(b)}')
    for i in range(4): A(f'v_mov_b32 {v(vones+i)}, 0x3f803f80')
    A(f'''s_mov_b32 {s(s_m1)}, 0x22222222
    s_mov_b32 {s(s_m1+1)}, 0x22222222
    s_mov_b32 {s(s_m2)}, 0x44444444
    s_mov_b32 {s(s_m2+1)}, 0x44444444
    s_mov_b32 {s(s_m3)}, 0x88888888
    s_mov_b32 {s(s_m3+1)}, 0x88888888
    s_mov_b32 {s(s_md)}, 0x00F0000F
    s_mov_b32 {s(s_md+1)}, 0xF0000F00''')

    A(f'''v_lshrrev_b32 {v(vPx)}, 4, {v(vln)}
    v_lshlrev_b32 {v(vPx)}, 15, {v(vPx)}
    v_and_b32 {v(vt0)}, 15, {v(vln)}
    v_lshl_add_u32 {v(vPx)}, {v(vt0)}, 4, {v(vPx)}
    s_lshl_b32 {s(s_tx)}, {s(s_rb)}, 2
    s_add_u32 {s(s_tx)}, {s(s_tx)}, {s(s_tg)}
    s_lshl_b32 {s(s_tx)}, {s(s_tx)}, 1
    s_add_u32 {s(s_tx)}, {s(s_tx)}, {s(s_cg)}
    s_lshl_b32 {s(s_tx)}, {s(s_tx)}, 8
    s_add_u32 {s(s_tx)}, {s(s_tx)}, {TX}''')
    def side_job():
        t = FR[0]+8; acc = FR[0]+9
        wox = A.label('wox'); done = A.label('sjdone')
        A(f'''s_cmp_ge_u32 {s(s_cb)}, 12
        s_cbranch_scc1 {done}
        s_cmp_ge_u32 {s(s_w)}, 3
        s_cbranch_scc1 {wox}
        v_mov_b32 {v(acc)}, 0''')
        for i in range(4): A(f'v_mov_b32 {v(t+8+i)}, {v(vbar+4+i)}')
        for i in range(8):
            A(f'''v_lshlrev_b32 {v(t)}, 16, {v(vbar+i)}
            v_and_b32 {v(vbar+i)}, 0xffff0000, {v(vbar+i)}
            v_add_f32 {v(acc)}, {v(acc)}, {v(t)}
            v_add_f32 {v(acc)}, {v(acc)}, {v(vbar+i)}''')
        for d in ('quad_perm:[1,0,3,2]', 'quad_perm:[2,3,0,1]', 'row_half_mirror', 'row_mirror'):
            A(f's_nop 1\nv_add_f32_dpp {v(acc)}, {v(acc)}, {v(acc)} {d} row_mask:0xf bank_mask:0xf')
        for sw in ('v_permlane16_swap_b32', 'v_permlane32_swap_b32'):
            A(f'''v_mov_b32 {v(t)}, {v(acc)}
            s_nop 1
            {sw} {v(acc)}, {v(t)}
            v_add_f32 {v(acc)}, {v(acc)}, {v(t)}''')
        A(f'''v_mul_f32 {v(acc)}, {f32(1.0/D)}, {v(acc)}
        v_cvt_pk_bf16_f32 {v(t)}, {v(acc)}, {v(acc)}
        v_and_b32 {v(t+2)}, 0xffff0000, {v(t)}
        v_sub_f32 {v(t+2)}, {v(acc)}, {v(t+2)}
        v_cvt_pk_bf16_f32 {v(t+4)}, {v(acc)}, {v(t+2)}
        s_lshl_b32 {s(s_t)}, {s(s_t2+2)}, 5
        s_add_u32 {s(s_t)}, {s(s_t)}, {XIMG}
        v_mov_b32 {v(t+5)}, 0
        v_mov_b32 {v(t+6)}, 0
        v_mov_b32 {v(t+7)}, 0
        v_mul_u32_u24 {v(t+3)}, 18432, {v(vln)}
        s_mov_b64 exec, 0xff
        buffer_store_dwordx4 {v(t+8,4)}, {v(t+3)}, {s(sWS,4)}, {s(s_t)} offen
        buffer_store_dwordx4 {v(t+4,4)}, {v(t+3)}, {s(sWS,4)}, {s(s_t)} offen offset:16
        s_branch {done}
        {wox}:
        s_cmp_ge_u32 {s(s_w)}, 6
        s_cbranch_scc1 {done}
        s_sub_u32 {s(s_t)}, {s(s_t2+2)}, 3
        s_mul_i32 {s(s_kc)}, {s(s_t)}, 3641
        s_lshr_b32 {s(s_kc)}, {s(s_kc)}, 16
        s_mul_i32 {s(s_kd)}, {s(s_kc)}, 18
        s_sub_u32 {s(s_kd)}, {s(s_t)}, {s(s_kd)}
        s_and_b32 {s(s_t)}, {s(s_kd)}, 3
        s_and_b32 {s(s_t2)}, {s(s_kd)}, 4
        s_lshl_b32 {s(s_t2)}, {s(s_t2)}, 1
        s_add_u32 {s(s_t)}, {s(s_t)}, {s(s_t2)}
        s_and_b32 {s(s_t2)}, {s(s_kd)}, 8
        s_lshr_b32 {s(s_t2)}, {s(s_t2)}, 1
        s_add_u32 {s(s_t)}, {s(s_t)}, {s(s_t2)}
        s_lshl_b32 {s(s_t2)}, {s(s_kc)}, 4
        s_add_u32 {s(s_t)}, {s(s_t)}, {s(s_t2)}
        s_lshl_b32 {s(s_t2)}, {s(s_kc)}, 1
        s_add_u32 {s(s_t2)}, {s(s_t2)}, {s(s_kd)}
        s_add_u32 {s(s_t2)}, {s(s_t2)}, {512-16}
        s_cmp_ge_u32 {s(s_kd)}, 16
        s_cselect_b32 {s(s_t)}, {s(s_t2)}, {s(s_t)}
        s_lshl_b32 {s(s_t)}, {s(s_t)}, 4
        s_add_u32 {s(s_t)}, {s(s_t)}, {WOX}
        v_mul_u32_u24 {v(t+3)}, 9216, {v(vln)}
        s_mov_b64 exec, 0xff
        buffer_store_dwordx4 {v(216,4)}, {v(t+3)}, {s(sWS,4)}, {s(s_t)} offen
        {done}:
        s_mov_b64 exec, -1''')
    def xcopy(cg):
        sk = A.label('nx')
        for back in (1, 2):
            if back == 2: A(f's_and_b32 {s(s_t)}, {s(s_cb)}, 13\ns_cmp_lg_u32 {s(s_t)}, 0\ns_cbranch_scc1 {sk}')
            A(f'''s_add_u32 {s(s_t)}, {s(s_kd)}, {18-back}
            s_sub_u32 {s(s_kc)}, {s(s_t)}, 18
            s_cselect_b32 {s(s_t)}, {s(s_t)}, {s(s_kc)}
            s_lshl_b32 {s(s_t)}, {s(s_t)}, 17
            s_add_u32 {s(s_t)}, {s(s_t)}, {s(s_tx)}
            buffer_store_dwordx4 {v(FR[back & 1]+4*cg,4)}, {v(vPx)}, {s(sWS,4)}, {s(s_t)} offen {STF}''')
        A(f'{sk}:')
    def reads(step, nm):
        f = FR[step & 1]; sl = step % NSLOT; th = sl//3; o = (sl % 3)*SLOT
        r = [f'ds_read_b128 {v(f,4)}, {v(vXa+th)} offset:{o}', f'ds_read_b128 {v(f+4,4)}, {v(vXa+th)} offset:{o+1024}']
        for u in range(nm):
            r.append(f'ds_read_b64_tr_b16 {v(f+8+4*u,2)}, {v(vWa+th)} offset:{o+32*u}')
            r.append(f'ds_read_b64_tr_b16 {v(f+10+4*u,2)}, {v(vWa+th)} offset:{o+32*u+2304}')
        r.append(f'ds_read_b64_tr_b16 {v(f+28,2)}, {v(vCa+th)} offset:{o}')
        r.append(f'ds_read_b64_tr_b16 {v(f+30,2)}, {v(vCa+th)} offset:{o+2304}')
        return r
    def mf(d, a, b, first):
        return f'v_mfma_f32_16x16x32_bf16 {v(d,4)}, {v(a,4)}, {v(b,4)}, ' + ('0' if first else v(d,4))
    def mfmas(step, cg, orient):
        f = FR[step & 1]; nm = 5 if cg == 0 else 4; fi = step == 0
        r = []
        for u in range(nm):
            for nt in range(2):
                wfr, xfr = f+8+4*u, f+4*nt
                r.append(mf(ACC+8*u+4*nt, wfr, xfr, fi) if orient == 1 else mf(ACC+8*u+4*nt, xfr, wfr, fi))
        r.append(mf(ACS, vones, f+28, fi))
        if cg == 0:
            r.append(mf(AC4, vones, f+24, fi))
        else:
            for nt in range(2):
                r.append(mf(AG[nt], f+4*nt, f+4*nt, fi))
                r.append(mf(AS[nt], vones, f+4*nt, fi))
        return r
    nz = A.label('nz')
    A(f'''s_cmp_ge_u32 s2, {FLAG_BYTES//4096}
    s_cbranch_scc1 {nz}
    v_mov_b32 {v(E)}, 0
    v_mov_b32 {v(E+1)}, 0
    v_lshlrev_b32 {v(vt0)}, 3, v0
    s_lshl_b32 {s(s_t)}, s2, 12
    s_add_u32 {s(s_t)}, {s(s_t)}, {FLAGS}
    buffer_store_dwordx2 {v(E,2)}, {v(vt0)}, {s(sWS,4)}, {s(s_t)} offen
    {nz}:''')
    lab = {(cg, o): A.label(f'k1_{cg}{o}') for cg in (0, 1) for o in (1, 2)}
    labV = A.label('isv')
    A(f'''s_lshr_b32 {s(s_t)}, {s(s_cb)}, 2
    s_cmp_eq_u32 {s(s_t)}, 2
    s_cbranch_scc1 {labV}
    s_cmp_eq_u32 {s(s_cg)}, 0
    s_cbranch_scc1 {lab[(0,1)]}
    s_branch {lab[(1,1)]}
    {labV}:
    s_cmp_eq_u32 {s(s_cg)}, 0
    s_cbranch_scc1 {lab[(0,2)]}
    s_branch {lab[(1,2)]}''')
    for cg in (0, 1):
        for orient in (1, 2):
            nm = 5 if cg == 0 else 4
            A('.p2align 6')
            A(f'{lab[(cg,orient)]}:')
            stamp(A, 1)
            ops = [('s', 0), ('s', 0)] + [('n', 0)]*cg + [('s', 1), ('s', 1), ('c', 0)]
            def need(step):
                last = max(i for i, (kind, st_) in enumerate(ops) if (kind == 's' and st_ <= step) or (kind == 'n' and st_ <= step))
                return len(ops) - 1 - last
            def issue(step):
                r = []
                if cg == 1 and step % 4 == 0: r += dma9(step); ops.append(('n', step))
                ops.extend([('s', step)]*2)
                return r + dma(step)
            A(f's_waitcnt vmcnt({need(0)})\ns_barrier')
            stamp(A, 2)
            for ln in reads(0, nm): A(ln)
            for ln in issue(2): A(ln)
            issued = 3; landed = 0
            A('s_waitcnt lgkmcnt(0)')
            for st in range(18):
                fill = []
                if st+1 < 18:
                    if landed < st+1:
                        landed = min(st+1 + (1 if st >= 2 else 0), 17)
                        A(f's_waitcnt vmcnt({need(landed)})\ns_barrier')
                    fill = reads(st+1, nm)
                    for _ in range(2):
                        if issued < min(18, st+1+LEAD):
                            fill = fill + issue(issued); issued += 1
                    if st == 8:
                        sk = A.label('nside')
                        fill = fill + [f's_cmp_ge_u32 {s(s_cb)}, 12\ns_cbranch_scc1 {sk}\n' +
                                       (f'buffer_load_dwordx4 {v(vbar,4)}, {v(17)}, {s(sW2,4)}, {s(s_br)} offen\nbuffer_load_dwordx4 {v(vbar+4,4)}, {v(18)}, {s(sW2,4)}, {s(s_br)} offen offset:1024\n' if cg == 0 else '') +
                                       f's_mov_b32 s58, {D*D*2}\ns_mov_b32 s59, 0x20000\ns_sub_u32 {s(s_t2)}, {s(s_br)}, {3*1152}\n'
                                       f'buffer_load_dwordx4 {v(216,4)}, {v(18)}, s[56:59], {s(s_t2)} offen offset:1024\n{sk}:']
                    if st == W2PF:
                        fill = fill + [f's_mul_i32 {s(s_t2)}, {s(s_i)}, {162*128}', f'v_lshlrev_b32 {v(vPw)}, 4, v0'] + \
                               [f'buffer_load_dwordx4 {v(212,4)}, {v(vPw)}, {s(sW2,4)}, {s(s_t2)} offen\ns_add_u32 {s(s_t2)}, {s(s_t2)}, 8192' for _ in range(3)]
                        ops.extend([('c', 0)]*3)
                if st == 9: stamp(A, 3)
                for ln in interleave(mfmas(st, cg, orient), fill): A(ln)
                if st+1 < 18: A('s_waitcnt lgkmcnt(0)')
            stamp(A, 4)
            xcopy(cg)
            A(f'''v_and_b32 {v(vt0)}, 15, {v(vln)}
            s_mul_i32 {s(s_t)}, {s(s_cg)}, 5
            s_add_u32 {s(s_t)}, {s(s_t)}, {s(s_tg)}
            s_lshl_b32 {s(s_t)}, {s(s_t)}, 4
            v_add_u32 {v(vt1)}, {s(s_t)}, {v(vt0)}
            v_lshlrev_b32 {v(vt1)}, 2, {v(vt1)}
            v_lshlrev_b32 {v(vt2)}, 2, {v(vt0)}
            v_add_u32 {v(vt1)}, {L_CS}, {v(vt1)}
            v_add_u32 {v(vt2)}, {L_CS+256}, {v(vt2)}
            s_lshl_b32 {s(s_t)}, {s(s_tg)}, 5
            v_add_u32 {v(E)}, {s(s_t)}, {v(vt0)}
            v_lshlrev_b32 {v(E)}, 2, {v(E)}
            v_add_u32 {v(E+1)}, {L_STM}, {v(E)}
            s_nop 1
            ds_write_b32 {v(vt1)}, {v(ACS)}''')
            if cg == 0:
                A(f'ds_write_b32 {v(vt2)}, {v(AC4)}')
            else:
                notq, noth, stdone = A.label('notq'), A.label('noth'), A.label('std')
                for nt in range(2):
                    g, sm = AG[nt], AS[nt]
                    A(f'''v_cndmask_b32 {v(g)}, {v(g)}, {v(g+1)}, {s(s_m1,2)}
                    v_cndmask_b32 {v(g)}, {v(g)}, {v(g+2)}, {s(s_m2,2)}
                    v_cndmask_b32 {v(g)}, {v(g)}, {v(g+3)}, {s(s_m3,2)}
                    v_mul_f32 {v(sm)}, {f32(1.0/D)}, {v(sm)}
                    v_mul_f32 {v(g)}, {f32(1.0/D)}, {v(g)}
                    v_fma_f32 {v(g)}, -{v(sm)}, {v(sm)}, {v(g)}
                    v_max_f32 {v(g)}, 0, {v(g)}
                    v_add_f32 {v(g+1)}, {f32(1e-5)}, {v(g)}
                    v_rsq_f32 {v(g+1)}, {v(g+1)}''')
                if orient == 1:
                    A(f's_cmp_ge_u32 {s(s_cb)}, 4\ns_cbranch_scc1 {notq}')
                    for nt in range(2): A(f'v_mul_f32 {v(AG[nt]+1)}, {f32(QS)}, {v(AG[nt]+1)}')
                    A(f'{notq}:\ns_cmp_lt_u32 {s(s_cb)}, 12\ns_cbranch_scc1 {noth}')
                    for nt in range(2):
                        g = AG[nt]
                        A(f'''v_mul_f32 {v(g+2)}, {v(g+1)}, {v(g+1)}
                        v_mov_b32 {v(g+3)}, {f32(1e-5)}
                        v_fmac_f32 {v(g+3)}, {v(g+2)}, {v(g)}
                        v_rsq_f32 {v(g+3)}, {v(g+3)}
                        s_nop 0
                        v_mul_f32 {v(g+1)}, {v(g+1)}, {v(g+3)}''')
                    A(f'{noth}:')
                A(f's_nop 0\ns_mov_b64 exec, {s(s_md,2)}')
                for nt in range(2):
                    A(f'ds_write_b32 {v(E+1)}, {v(AS[nt])} offset:{64*nt}')
                    A(f'ds_write_b32 {v(E+1)}, {v(AG[nt]+1)} offset:{512+64*nt}')
                if orient == 1:
                    A(f'''s_cmp_lg_u32 {s(s_cb)}, 4
                    s_cbranch_scc1 {stdone}
                    s_lshl_b32 {s(s_t)}, {s(s_rb)}, 9
                    s_add_u32 {s(s_t)}, {s(s_t)}, {ST}
                    s_add_u32 {s(s_t2)}, {s(s_t)}, 8192''')
                    for nt in range(2):
                        A(f'buffer_store_dword {v(AS[nt])}, {v(E)}, {s(sWS,4)}, {s(s_t)} offen offset:{64*nt}')
                        A(f'buffer_store_dword {v(AG[nt]+1)}, {v(E)}, {s(sWS,4)}, {s(s_t2)} offen offset:{64*nt}')
                    A(f'{stdone}:')
                A('s_mov_b64 exec, -1')
            A('s_waitcnt lgkmcnt(0)\ns_barrier')
            stamp(A, 5)
            side_job()
            u0 = 5*cg
            if orient == 1:
                CS = E+8; MEAN = E+2; R = E+4; P = E+32; TMP = list(range(E+40, E+48)); CC = E+48
                A(f'''v_lshrrev_b32 {v(vt0)}, 4, {v(vln)}
                v_lshlrev_b32 {v(vt0)}, 4, {v(vt0)}
                v_add_u32 {v(vt0)}, {L_CS+64*u0}, {v(vt0)}''')
                for nt in range(2):
                    A(f'ds_read_b32 {v(MEAN+nt)}, {v(E+1)} offset:{64*nt}')
                    A(f'ds_read_b32 {v(R+nt)}, {v(E+1)} offset:{512+64*nt}')
                for u in range(nm): A(f'ds_read_b128 {v(CS+4*u,4)}, {v(vt0)} offset:{64*u}')
                A(f'''v_lshrrev_b32 {v(vt1)}, 5, {v(vln)}
                v_lshlrev_b32 {v(vt1)}, 15, {v(vt1)}
                v_and_b32 {v(vt2)}, 31, {v(vln)}
                v_lshl_add_u32 {v(vt1)}, {v(vt2)}, 4, {v(vt1)}
                s_lshr_b32 {s(s_t)}, {s(s_cb)}, 2
                s_min_u32 {s(s_t)}, {s(s_t)}, 2
                s_mul_i32 {s(s_t)}, {s(s_t)}, {TSZ}
                s_mul_i32 {s(s_t2)}, {s(s_cbl)}, {18*GP}
                s_add_u32 {s(s_t)}, {s(s_t)}, {s(s_t2)}
                s_lshl_b32 {s(s_t2)}, {s(s_rb)}, 2
                s_add_u32 {s(s_t2)}, {s(s_t2)}, {s(s_tg)}
                s_lshl_b32 {s(s_t2)}, {s(s_t2)}, 9
                s_add_u32 {s(s_t)}, {s(s_t)}, {s(s_t2)}
                s_add_u32 {s(s_t)}, {s(s_t)}, {TQ + 2*u0*GP}
                s_waitcnt lgkmcnt(0)''')
                for u in range(nm):
                    for nt in range(2):
                        for j in range(4):
                            a = ACC+8*u+4*nt+j
                            A(f'v_fma_f32 {v(a)}, -{v(MEAN+nt)}, {v(CS+4*u+j)}, {v(a)}')
                def pack_store(u):
                    p = P + 4*(u & 1)
                    for nt in range(2):
                        for jj in range(2):
                            a = ACC+8*u+4*nt+2*jj
                            A(f'v_cvt_pk_bf16_f32 {v(p+2*nt+jj)}, {v(a)}, {v(a+1)}')
                    A(f'''s_nop 1
                    v_permlane16_swap_b32 {v(p)}, {v(p+2)}
                    v_permlane16_swap_b32 {v(p+1)}, {v(p+3)}
                    buffer_store_dwordx4 {v(p,4)}, {v(vt1)}, {s(sWS,4)}, {s(s_t)} offen {STF}
                    s_add_u32 {s(s_t)}, {s(s_t)}, {2*GP}''')
                ish = A.label('ish')
                A(f's_cmp_ge_u32 {s(s_cb)}, 12\ns_cbranch_scc1 {ish}')
                for u in range(nm):
                    for nt in range(2):
                        for j in range(4):
                            a = ACC+8*u+4*nt+j
                            A(f'v_mul_f32 {v(a)}, {v(R+nt)}, {v(a)}')
                    pack_store(u)
                A(f's_branch {done}')
                A(f'{ish}:')
                for nt in range(2):
                    c = CC+4*nt
                    A(f'''v_mul_f32 {v(c)}, {f32(C1)}, {v(R+nt)}
                    v_mul_f32 {v(c+1)}, {v(R+nt)}, {v(R+nt)}
                    v_mul_f32 {v(c+1)}, {v(c+1)}, {v(R+nt)}
                    v_mul_f32 {v(c+1)}, {f32(C2)}, {v(c+1)}
                    v_rcp_f32 {v(c+2)}, {v(R+nt)}''')
                for u in range(nm):
                    for nt in range(2):
                        c = CC+4*nt
                        gelu_block(A, [ACC+8*u+4*nt+j for j in range(4)], TMP[:4], c, c+1, c+2)
                    pack_store(u)
                A(f's_branch {done}')
            else:
                MEAN = E+8; R = E+16; CS = E+24; P = E+32; AD = E+40
                A(f'''v_lshrrev_b32 {v(vt0)}, 4, {v(vln)}
                v_lshlrev_b32 {v(vt0)}, 4, {v(vt0)}
                s_lshl_b32 {s(s_t)}, {s(s_tg)}, 7
                s_add_u32 {s(s_t)}, {s(s_t)}, {L_STM}
                v_add_u32 {v(vt0)}, {s(s_t)}, {v(vt0)}
                v_and_b32 {v(vt1)}, 15, {v(vln)}
                v_lshlrev_b32 {v(vt2)}, 2, {v(vt1)}
                v_add_u32 {v(vt2)}, {L_CS+64*u0}, {v(vt2)}''')
                for nt in range(2):
                    A(f'ds_read_b128 {v(MEAN+4*nt,4)}, {v(vt0)} offset:{64*nt}')
                    A(f'ds_read_b128 {v(R+4*nt,4)}, {v(vt0)} offset:{512+64*nt}')
                for u in range(nm): A(f'ds_read_b32 {v(CS+u)}, {v(vt2)} offset:{64*u}')
                A(f'''v_lshrrev_b32 {v(vt0)}, 4, {v(vln)}
                v_mul_u32_u24 {v(vt0)}, 320, {v(vt0)}
                s_mul_i32 {s(s_kc)}, {s(s_tg)}, 10240
                v_add_u32 {v(vt0)}, {s(s_kc)}, {v(vt0)}
                s_lshl_b32 {s(s_t)}, {s(s_rb)}, 2
                s_add_u32 {s(s_t)}, {s(s_t)}, {s(s_tg)}
                s_mul_i32 {s(s_t)}, {s(s_t)}, 1280
                s_mul_i32 {s(s_t2)}, {s(s_cbl)}, {8*64*1280}
                s_add_u32 {s(s_t)}, {s(s_t)}, {s(s_t2)}
                s_add_u32 {s(s_t)}, {s(s_t)}, {VB}
                s_mov_b32 {s(s_t2)}, {1280 - 18*16}''')
                for u in range(nm):
                    A(f'''v_add_u32 {v(AD+u)}, {16*(u0+u)}, {v(vt1)}
                    v_mul_u32_u24 {v(vt2)}, 3641, {v(AD+u)}
                    v_lshrrev_b32 {v(vt2)}, 16, {v(vt2)}
                    v_lshl_add_u32 {v(AD+u)}, {v(AD+u)}, 4, {v(vt0)}
                    v_mad_u32_u24 {v(AD+u)}, {v(vt2)}, {s(s_t2)}, {v(AD+u)}''')
                if cg == 1:
                    A(f'''v_and_b32 {v(vt0)}, 31, {v(vln)}
                    v_mul_u32_u24 {v(vt0)}, 320, {v(vt0)}
                    v_lshrrev_b32 {v(vt2)}, 5, {v(vln)}
                    v_lshl_add_u32 {v(vt0)}, {v(vt2)}, 4, {v(vt0)}
                    v_add_u32 {v(vt0)}, {s(s_kc)}, {v(vt0)}
                    s_mov_b32 exec_lo, 0
                    v_mov_b32 {v(vones)}, 0
                    v_mov_b32 {v(vones+1)}, 0
                    v_mov_b32 {v(vones+2)}, 0
                    v_mov_b32 {v(vones+3)}, 0
                    s_mov_b32 exec_lo, -1
                    ds_write_b128 {v(vt0)}, {v(vones,4)} offset:288''')
                A('s_waitcnt lgkmcnt(0)')
                for u in range(nm):
                    p = P + 4*(u & 1)
                    for nt in range(2):
                        for j in range(4):
                            a = ACC+8*u+4*nt+j
                            A(f'v_fma_f32 {v(a)}, -{v(MEAN+4*nt+j)}, {v(CS+u)}, {v(a)}')
                            A(f'v_mul_f32 {v(a)}, {v(R+4*nt+j)}, {v(a)}')
                        for jj in range(2):
                            a = ACC+8*u+4*nt+2*jj
                            A(f'v_cvt_pk_bf16_f32 {v(p+2*nt+jj)}, {v(a)}, {v(a+1)}')
                    A(f'''s_nop 1
                    v_permlane32_swap_b32 {v(p)}, {v(p+2)}
                    v_permlane32_swap_b32 {v(p+1)}, {v(p+3)}
                    ds_write_b128 {v(AD+u)}, {v(p,4)}''')
                A(f'''v_add_u32 {v(vt0)}, {320*cg}, {v(vln)}
                v_lshl_add_u32 {v(vt1)}, {v(vt0)}, 4, {s(s_kc)}
                s_mov_b32 {s(s_t2)}, {64*1280 - 1280}''')
                for n in range(5):
                    A(f'''v_add_u32 {v(AD+n)}, {64*n}, {v(vt0)}
                    v_mul_u32_u24 {v(vt2)}, 820, {v(AD+n)}
                    v_lshrrev_b32 {v(vt2)}, 16, {v(vt2)}
                    v_lshlrev_b32 {v(AD+n)}, 4, {v(AD+n)}
                    v_mad_u32_u24 {v(AD+n)}, {v(vt2)}, {s(s_t2)}, {v(AD+n)}''')
                A('s_waitcnt lgkmcnt(0)\ns_barrier')
                for n in range(5): A(f'ds_read_b128 {v(ACC+4*n,4)}, {v(vt1)} offset:{1024*n}')
                for n in range(5):
                    A(f's_waitcnt lgkmcnt({4-n})\nbuffer_store_dwordx4 {v(ACC+4*n,4)}, {v(AD+n)}, {s(sWS,4)}, {s(s_t)} offen {STF}')
                A(f's_branch {done}')
    A(f'''    {done}:''')
    hold_end(A, 'k1', 0)
    stamp(A, 6)
    if STAMPS: A('s_waitcnt vmcnt(0)')
    stamp(A, 7)
    stamp_flush(A, STAMP, 2)
    A(f'{done2}:\ns_endpgm')
    return NV
```

```python
import os
from asmlib import *
from layout import *
K3_LDS = 576*128
K3_NV = 256 if DBGT else 232
K3_GRID = 240

def gen_k3(A, name, npart=10, li=2):
    sWO, sWS, sOUT = 4, 12, 8
    s_w, s_n, s_tb, s_sg, s_t, s_t2, s_src, s_m = range(20, 28)
    vln, vDs, vDr, vB, vt0, vt1, vt2, vO = 1, 2, 3, 4, 5, 6, 7, 8
    vAa = 12; E = [16, 20]; ACC = 24; AF = [40, 56]; OB = 72; PB = 144
    kernel_begin(A, name)
    done = A.label('k3done')
    stamp(A, 0)
    A(f'''s_and_b32 {s(s_n)}, s2, 7
    s_mul_i32 {s(s_n)}, {s(s_n)}, 30
    s_lshr_b32 {s(s_t)}, s2, 3
    s_add_u32 {s(s_n)}, {s(s_n)}, {s(s_t)}
    s_cmp_ge_u32 s2, {K3_GRID}
    s_cbranch_scc1 {done}
    s_cmp_ge_u32 {s(s_n)}, 234
    s_cbranch_scc1 {done}
    s_load_dwordx2 s[4:5], s[0:1], {ARG['wo']}
    s_load_dwordx2 s[8:9], s[0:1], {ARG['out']}
    s_load_dwordx2 s[12:13], s[0:1], {ARG['ws']}
    v_lshrrev_b32 {v(vt0)}, 6, v0
    v_and_b32 {v(vln)}, 63, v0
    v_readfirstlane_b32 {s(s_w)}, {v(vt0)}
    s_mul_i32 {s(s_tb)}, {s(s_n)}, 7282
    s_lshr_b32 {s(s_tb)}, {s(s_tb)}, 16
    s_mul_i32 {s(s_t)}, {s(s_tb)}, 9
    s_sub_u32 {s(s_sg)}, {s(s_n)}, {s(s_t)}
    s_mov_b32 s6, {D*D*2}
    s_mov_b32 s7, 0x20000
    s_mov_b32 s10, {S*D*2}
    s_mov_b32 s11, 0x20000
    s_mov_b32 s14, {WS_BYTES}
    s_mov_b32 s15, 0x20000
    s_mul_i32 {s(s_t)}, {s(s_tb)}, 5
    s_add_u32 {s(s_t)}, {s(s_t)}, {s(s_w)}
    s_lshl_b32 {s(s_t)}, {s(s_t)}, 4
    v_and_b32 {v(vt0)}, 15, {v(vln)}
    v_add_u32 {v(vO)}, {s(s_t)}, {v(vt0)}
    v_lshrrev_b32 {v(vt1)}, 4, {v(vln)}
    v_lshlrev_b32 {v(vB)}, 15, {v(vt1)}
    v_lshl_add_u32 {v(vB)}, {v(vO)}, 4, {v(vB)}
    v_lshrrev_b32 {v(vt0)}, 3, {v(vln)}
    v_and_b32 {v(vt1)}, 2, {v(vt0)}
    s_and_b32 {s(s_t)}, {s(s_w)}, 1
    s_lshl_b32 {s(s_t)}, {s(s_t)}, 2
    v_or_b32 {v(vt1)}, {s(s_t)}, {v(vt1)}
    v_xor_b32 {v(vt1)}, {v(vt1)}, {v(vln)}
    v_and_b32 {v(vt1)}, 7, {v(vt1)}
    v_lshlrev_b32 {v(vt1)}, 4, {v(vt1)}
    v_and_b32 {v(vt2)}, 4, {v(vt0)}
    v_add_u32 {v(vt2)}, {v(vt2)}, {v(vt0)}
    v_mul_u32_u24 {v(vt2)}, 1152, {v(vt2)}
    v_add_u32 {v(vDs)}, {v(vt2)}, {v(vt1)}
    v_lshrrev_b32 {v(vt2)}, 1, {v(vt0)}
    v_lshl_add_u32 {v(vt2)}, {v(vt2)}, 4, {v(vt0)}
    v_mul_u32_u24 {v(vt2)}, 1152, {v(vt2)}
    v_add_u32 {v(vDr)}, {v(vt2)}, {v(vt1)}
    s_lshr_b32 {s(s_t)}, {s(s_w)}, 1
    s_mul_i32 {s(s_t)}, {s(s_t)}, {18*1152}
    s_and_b32 {s(s_t2)}, {s(s_w)}, 1
    s_mul_i32 {s(s_t2)}, {s(s_t2)}, {4*1152}
    s_add_u32 {s(s_src)}, {s(s_t)}, {s(s_t2)}
    s_lshl_b32 {s(s_t)}, {s(s_sg)}, 7
    s_add_u32 {s(s_src)}, {s(s_src)}, {s(s_t)}
    s_lshl_b32 {s(s_m)}, {s(s_w)}, 10
    s_waitcnt lgkmcnt(0)''')
    nod = A.label('k3nod')
    A(f's_cmp_eq_u32 {s(s_w)}, 4\ns_cbranch_scc1 {nod}')
    for st in range(16):
        A(f'''s_add_u32 m0, {s(s_m)}, {4096*st}
        s_nop 0
        buffer_load_dwordx4 {v(vDs)}, {s(sWO,4)}, {s(s_src)} offen lds
        s_add_u32 {s(s_src)}, {s(s_src)}, {36*1152}''')
    A(f'''s_mul_i32 {s(s_src)}, {s(s_w)}, {72*1152}
    s_add_u32 {s(s_src)}, {s(s_src)}, {s(s_t)}
    s_add_u32 {s(s_src)}, {s(s_src)}, {16*1152}''')
    for st in range(16, 18):
        A(f'''s_add_u32 m0, {s(s_m)}, {4096*st}
        s_nop 0
        buffer_load_dwordx4 {v(vDr)}, {s(sWO,4)}, {s(s_src)} offen lds
        s_add_u32 {s(s_src)}, {s(s_src)}, {4*72*1152}''')
    A(f'''{nod}:
    v_lshlrev_b32 {v(vt0)}, 2, {v(vO)}
    s_mov_b32 {s(s_t)}, {MEAN}
    buffer_load_dword {v(9)}, {v(vt0)}, {s(sWS,4)}, {s(s_t)} offen
    s_mov_b32 {s(s_t)}, {TO}''')
    for st in range(18):
        A(f'buffer_load_dwordx4 {v(OB+4*st,4)}, {v(vB)}, {s(sWS,4)}, {s(s_t)} offen\ns_add_u32 {s(s_t)}, {s(s_t)}, {4*GP}')
    A(f's_lshl_b32 {s(s_t)}, {s(s_sg)}, 18\ns_add_u32 {s(s_t)}, {s(s_t)}, {PART}')
    pl = []
    for j in range(npart):
        for hs in range(2):
            pre = f's_lshl_b32 {s(s_t)}, {s(s_sg)}, 18\ns_add_u32 {s(s_t)}, {s(s_t)}, {TY if j == 8 else TX}\n' if (j >= 8 and hs == 0) else ''
            pl.append(pre + f'buffer_load_dwordx4 {v(PB+8*j+4*hs,4)}, {v(vB)}, {s(sWS,4)}, {s(s_t)} offen\ns_add_u32 {s(s_t)}, {s(s_t)}, {4*GP if hs == 0 else TSZ-4*GP}')
    PRE = int(os.environ.get('K3PRE', 4))
    for ln in pl[:PRE]: A(ln)
    stamp(A, 1)
    A(f'''v_lshrrev_b32 {v(vt0)}, 4, {v(vln)}
    v_bfe_u32 {v(vt1)}, {v(vln)}, 2, 2
    v_lshl_add_u32 {v(vt2)}, {v(vt0)}, 3, {v(vt1)}
    v_lshlrev_b32 {v(vt2)}, 7, {v(vt2)}
    v_and_b32 {v(vDs)}, 3, {v(vln)}
    v_lshl_add_u32 {v(vt2)}, {v(vDs)}, 3, {v(vt2)}
    v_lshrrev_b32 {v(vt1)}, 1, {v(vt1)}
    v_and_b32 {v(vDs)}, 1, {v(vt0)}
    v_lshl_or_b32 {v(vt1)}, {v(vDs)}, 1, {v(vt1)}''')
    for u in range(4):
        A(f'v_xor_b32 {v(vDs)}, {u}, {v(vt1)}\nv_lshl_add_u32 {v(vAa+u)}, {v(vDs)}, 5, {v(vt2)}')
    A(f'''v_and_b32 {v(vt1)}, 15, {v(vln)}
    v_lshlrev_b32 {v(vt0)}, 3, {v(vt0)}
    v_sub_u32 {v(vt0)}, {v(vt1)}, {v(vt0)}
    v_and_b32 {v(vt1)}, 1, {v(vln)}
    v_lshlrev_b32 {v(vt1)}, 4, {v(vt1)}
    v_mov_b32 {v(vt2)}, 0x3f80
    v_lshlrev_b32 {v(vt1)}, {v(vt1)}, {v(vt2)}
    v_ashrrev_i32 {v(vt0)}, 1, {v(vt0)}''')
    for e in range(2):
        for d in range(4):
            A(f'v_cmp_eq_u32 vcc, {d - 8*e}, {v(vt0)}\ns_nop 1\nv_cndmask_b32 {v(E[e]+d)}, 0, {v(vt1)}, vcc')
    def rd(st):
        o = (st % 9)*4096; r = []
        for u in range(4):
            b = AF[st & 1]+4*u
            r += [f'ds_read_b64_tr_b16 {v(b,2)}, {v(vAa+u)} offset:{o}', f'ds_read_b64_tr_b16 {v(b+2,2)}, {v(vAa+u)} offset:{o+512}']
        return r
    np2 = 2*npart
    A(f's_waitcnt vmcnt({PRE})\ns_barrier')
    stamp(A, 2)
    for ln in rd(0): A(ln)
    for st in range(18):
        nxt = []
        if st == 8: nxt += [f'v_add_u32 {v(vAa+u)}, {9*4096}, {v(vAa+u)}' for u in range(4)]
        if st < 17: nxt += rd(st+1)
        for ln in nxt: A(ln)
        if PRE+st < len(pl): A(pl[PRE+st])
        A(f's_waitcnt lgkmcnt({8 if st < 17 else 0})')
        for u in range(4):
            A(f'v_mfma_f32_16x16x32_bf16 {v(ACC+4*u,4)}, {v(AF[st&1]+4*u,4)}, {v(OB+4*st,4)}, ' + ('0' if st == 0 else v(ACC+4*u,4)))
    stamp(A, 3)
    for j in range(npart):
        for hs in range(2):
            A(f's_waitcnt vmcnt({np2-1-2*j-hs})')
            for e in range(2):
                u = 2*hs+e
                A(f'v_mfma_f32_16x16x32_bf16 {v(ACC+4*u,4)}, {v(E[e],4)}, {v(PB+8*j+4*hs,4)}, {v(ACC+4*u,4)}')
    A(f'''v_mul_u32_u24 {v(vO)}, 1152, {v(vO)}
    v_bfe_u32 {v(vt0)}, {v(vln)}, 4, 1
    v_lshl_add_u32 {v(vO)}, {v(vt0)}, 5, {v(vO)}
    v_lshrrev_b32 {v(vt0)}, 5, {v(vln)}
    v_lshl_add_u32 {v(vO)}, {v(vt0)}, 4, {v(vO)}
    s_lshl_b32 {s(s_t)}, {s(s_sg)}, 7
    s_nop 2''')
    stamp(A, 4)
    for i in range(16): A(f'v_add_f32 {v(ACC+i)}, {v(ACC+i)}, {v(9)}')
    for p in range(2):
        b = AF[0]+4*p
        for e in range(2):
            for jj in range(2):
                a = ACC+8*p+4*e+2*jj
                A(f'v_cvt_pk_bf16_f32 {v(b+2*e+jj)}, {v(a)}, {v(a+1)}')
        A(f'''s_nop 1
        v_permlane16_swap_b32 {v(b)}, {v(b+2)}
        v_permlane16_swap_b32 {v(b+1)}, {v(b+3)}
        buffer_store_dwordx4 {v(b,4)}, {v(vO)}, {s(sOUT,4)}, {s(s_t)} offen offset:{64*p} {os.environ.get('OST', 'sc1')}''')
    if STAMPS: A('s_waitcnt vmcnt(0)')
    stamp(A, 5)
    stamp_flush(A, STAMP + li*512*8*64, 2)
    A(f'{done}:\ns_endpgm')
```

```python
import os
from asmlib import *
from layout import *
from k1 import C1, C2
ABL = os.environ.get('ABL', '')

ORDER = os.environ.get('ORDER', 'mid'); SPREAD = os.environ.get('SPREAD', '1') == '1'
TAIL = os.environ.get('TAIL') == '1'
RS = 12288; NR = 5
L_STASH = RS*NR; L_X = L_STASH
MLP_LDS = L_X + 18432
MLP_NV = 256

sX, sM, sWS = 4, 8, 12
s_w, s_r, s_c, s_j, s_rb, s_t, s_t2, s_src, s_m, s_sig, s_cnt, s_jump, s_st, s_pb, s_rbw, s_cur = range(20, 36)
p_w2, p_w3, p_w4 = 40, 42, 44
vln, vDs, vA0, vA1, vc1, vc2, vir = 1, 2, 3, 4, 5, 6, 7
TMP = [8, 9, 10, 11]
Y = 12; ACC = [156, 172]; AF = 188; OWNR = 204; vSt, vT, vx0, vx1 = 252, 253, 254, 255

MAP = {'slice': f's_mov_b32 s{s_j}, s{s_t2}\ns_mov_b32 s{s_rb}, s{s_cnt}',
       'rows': f's_mov_b32 s{s_j}, s{s_sig}\ns_mov_b32 s{s_rb}, s{s_rbw}',
       'half': f's_and_b32 s{s_j}, s{s_t2}, 1\ns_lshl_b32 s{s_j}, s{s_j}, 2\ns_lshr_b32 s{s_rb}, s{s_cnt}, 3\ns_add_u32 s{s_j}, s{s_j}, s{s_rb}\n'
               f's_lshr_b32 s{s_rb}, s{s_t2}, 1\ns_lshl_b32 s{s_rb}, s{s_rb}, 3\ns_and_b32 s{s_t}, s{s_cnt}, 7\ns_add_u32 s{s_rb}, s{s_rb}, s{s_t}'}

THR = int(os.environ.get('THR', 12))
class VM:
    def __init__(self, A): self.A = A; self.n = 0; self.tag = {}; self.done = 0
    def throttle(self, n=None):
        n = THR if n is None else n
        if self.n - self.done > n:
            self.A(f's_waitcnt vmcnt({n})'); self.done = self.n - n
    def emit(self, ln):
        if isinstance(ln, tuple):
            ln, tg = ln
            self.A(ln); self.n += 1; self.tag[tg] = self.n
        else:
            self.A(ln)
            if ln.lstrip().startswith(('buffer_', 'global_')): self.n += 1
    def wait(self, *tags):
        assert ABL or all(t in self.tag for t in tags), tags
        need = max([self.tag.get(t, 0) for t in tags])
        if need > self.done:
            self.A(f's_waitcnt vmcnt({min(63, self.n - need)})'); self.done = need

def matrix_lane_offsets(A, dst, pitch, wrows):
    A(f'''v_lshrrev_b32 {v(TMP[0])}, 3, {v(vln)}
    v_lshlrev_b32 {v(TMP[1])}, 1, {v(TMP[0])}
    v_and_b32 {v(TMP[1])}, 4, {v(TMP[1])}
    v_xor_b32 {v(TMP[1])}, {v(TMP[1])}, {v(vln)}
    v_and_b32 {v(TMP[1])}, 7, {v(TMP[1])}
    {f'v_add_u32 {v(TMP[0])}, {s(wrows)}, {v(TMP[0])}' if wrows else ''}
    v_mul_u32_u24 {v(TMP[0])}, {pitch}, {v(TMP[0])}
    v_lshl_add_u32 {v(dst)}, {v(TMP[1])}, 4, {v(TMP[0])}''')
def abase(dst, hrows, t0, t1):
    return f'''v_lshrrev_b32 {v(t0)}, 5, {v(vln)}
    v_bfe_u32 {v(t1)}, {v(vln)}, 2, 2
    v_mad_u32_u24 {v(t0)}, {v(t0)}, {hrows}, {v(t1)}
    v_lshlrev_b32 {v(t0)}, 7, {v(t0)}
    v_lshrrev_b32 {v(t1)}, 1, {v(t1)}
    v_xor_b32 {v(t1)}, {s(s_c)}, {v(t1)}
    v_lshl_add_u32 {v(t0)}, {v(t1)}, 6, {v(t0)}
    v_bfe_u32 {v(t1)}, {v(vln)}, 4, 1
    v_lshl_add_u32 {v(t0)}, {v(t1)}, 5, {v(t0)}
    v_and_b32 {v(t1)}, 3, {v(vln)}
    v_lshl_add_u32 {v(dst)}, {v(t1)}, 3, {v(t0)}'''.split('\n')
def lines(fn):
    B = Asm(); fn(B); return [x.strip() for x in B.lines]
def gelu_pack(acc, dst):
    r = []
    for b in range(0, 16, 4):
        rs = [acc+b+i for i in range(4)]
        r += [f'v_mul_f32 {v(t)}, {v(a)}, {v(a)}' for a, t in zip(rs, TMP)]
        r += [f'v_fma_f32 {v(t)}, {v(t)}, {v(vc2)}, {v(vc1)}' for a, t in zip(rs, TMP)]
        r += [f'v_mul_f32 {v(t)}, {v(t)}, {v(a)}' for a, t in zip(rs, TMP)]
        r += [f'v_exp_f32 {v(t)}, {v(t)}' for a, t in zip(rs, TMP)]
        r += [f'v_fma_f32 {v(t)}, {v(t)}, {v(vir)}, {v(vir)}' for a, t in zip(rs, TMP)]
        r += [f'v_rcp_f32 {v(t)}, {v(t)}' for a, t in zip(rs, TMP)]
        r += [f'v_mul_f32 {v(a)}, {v(a)}, {v(t)}' for a, t in zip(rs, TMP)]
        r += [f'v_cvt_pk_bf16_f32 {v(dst+b//2+i)}, {v(acc+b+2*i)}, {v(acc+b+2*i+1)}' for i in range(2)]
    return r
def pack_store_T(acc, soff, flag):
    r = [f'v_cvt_pk_bf16_f32 {v(acc+i)}, {v(acc+2*i)}, {v(acc+2*i+1)}' for i in range(8)]
    for a in range(2):
        b = acc+4*a
        r += [f'v_permlane32_swap_b32 {v(b)}, {v(b+2)}', f'v_permlane32_swap_b32 {v(b+1)}, {v(b+3)}',
              f'buffer_store_dwordx4 {v(b,4)}, {v(vSt)}, {s(sWS,4)}, {s(soff)} offen {flag}', f's_add_u32 {s(soff)}, {s(soff)}, {2*GP}']
    return r
def token_regs(A, srb):
    A(f'''s_lshl_b32 {s(s_t)}, {s(srb)}, 1
    s_add_u32 {s(s_t)}, {s(s_t)}, {s(s_r)}
    s_lshl_b32 {s(s_t)}, {s(s_t)}, 5
    v_and_b32 {v(vT)}, 31, {v(vln)}
    v_add_u32 {v(vT)}, {s(s_t)}, {v(vT)}
    v_lshrrev_b32 {v(TMP[0])}, 5, {v(vln)}
    v_lshlrev_b32 {v(vSt)}, 15, {v(TMP[0])}
    v_lshl_add_u32 {v(vSt)}, {v(vT)}, 4, {v(vSt)}''')

def prologue(A, s_id):
    A(f'''s_load_dwordx2 s[4:5], s[0:1], {ARG['x']}
    s_load_dwordx4 {s(p_w2,4)}, s[0:1], {ARG['w2']}
    s_load_dwordx2 {s(p_w4,2)}, s[0:1], {ARG['w4']}
    s_load_dwordx2 s[12:13], s[0:1], {ARG['ws']}
    v_lshrrev_b32 {v(TMP[0])}, 6, v0
    v_and_b32 {v(vln)}, 63, v0
    v_readfirstlane_b32 {s(s_w)}, {v(TMP[0])}
    s_and_b32 {s(s_t2)}, {s(s_id)}, 7
    s_lshr_b32 {s(s_cnt)}, {s(s_id)}, 3
    s_and_b32 {s(s_t)}, {s(s_cnt)}, 3
    s_lshl_b32 {s(s_rbw)}, {s(s_t2)}, 2
    s_add_u32 {s(s_rbw)}, {s(s_rbw)}, {s(s_t)}
    s_lshr_b32 {s(s_sig)}, {s(s_cnt)}, 2
    {MAP[os.environ.get('MAP', 'half')]}
    s_mov_b32 s6, {S*D*2}
    s_mov_b32 s7, 0x20000
    s_mov_b32 s11, 0x20000
    s_mov_b32 s14, {WS_BYTES}
    s_mov_b32 s15, 0x20000
    s_and_b32 {s(s_r)}, {s(s_w)}, 1
    s_lshr_b32 {s(s_c)}, {s(s_w)}, 1
    s_lshl_b32 {s(s_m)}, {s(s_w)}, 10''')

def flag_regs(one, off):
    return [f'v_mov_b32 {v(one)}, 1', f'v_min_u32 {v(off)}, 1, {v(vln)}', f'v_lshlrev_b32 {v(off)}, 30, {v(off)}']
def flag_store(A, soff, t0, t1):
    for ln in flag_regs(t0, t1): A(ln)
    A(f'buffer_store_dword {v(t0)}, {v(t1)}, s[12:15], {s(soff)} offen sc1')

def poll(A, soff, t0, t1, scnt, lane=vln, sleep=1):
    lp, got = A.label('poll'), A.label('got')
    A(f'''v_lshlrev_b32 {v(t0)}, 2, {v(lane)}
    s_mov_b32 {s(scnt)}, 0
    s_mov_b32 exec_hi, 0
    {lp}:
    buffer_load_dword {v(t1)}, {v(t0)}, s[12:15], {s(soff)} offen sc1
    s_add_u32 {s(scnt)}, {s(scnt)}, 1
    s_waitcnt vmcnt(0)
    v_cmp_ne_u32 vcc, 1, {v(t1)}
    s_cbranch_vccz {got}
    s_cmp_lt_u32 {s(scnt)}, 0x40000
    s_sleep {sleep}
    s_cbranch_scc1 {lp}
    {got}:
    s_mov_b64 exec, -1''')

def gen_w2(A):
    vm = VM(A)
    MB = OWNR; XR = OWNR+16; M0, R0, SQa = OWNR+26, OWNR+27, OWNR+28; vB = OWNR+29; SH = [OWNR+30+i for i in range(4)]
    token_regs(A, s_rbw)
    matrix_lane_offsets(A, vDs, 1152, None)
    s_q = s_cur
    A(f'''v_lshlrev_b32 {v(vx1)}, 4, {v(vln)}
    s_and_b32 {s(s_q)}, {s(s_sig)}, 3
    s_add_u32 {s(s_t)}, {s(s_q)}, {s(s_w)}
    s_and_b32 {s(s_t)}, {s(s_t)}, 3
    s_mul_i32 {s(s_t)}, {s(s_t)}, 4608
    s_mul_i32 {s(s_cnt)}, {s(s_sig)}, 18432
    s_add_u32 {s(s_cnt)}, {s(s_cnt)}, {s(s_t)}
    s_add_u32 {s(s_cnt)}, {s(s_cnt)}, {XIMG}
    s_mul_i32 {s(s_t2)}, {s(s_w)}, 4608
    s_add_u32 m0, {s(s_t2)}, {L_X}
    s_mul_i32 {s(s_m)}, {s(s_w)}, 3072
    s_lshl_b32 {s(s_src)}, {s(s_sig)}, 7
    s_mul_i32 {s(s_t)}, {s(s_q)}, {144*1152}
    s_add_u32 {s(s_src)}, {s(s_src)}, {s(s_t)}
    s_mul_i32 {s(s_t)}, {s(s_w)}, {24*1152}
    s_add_u32 {s(s_src)}, {s(s_src)}, {s(s_t)}
    s_waitcnt lgkmcnt(0)
    s_mov_b32 s8, {s(p_w2)}
    s_mov_b32 s9, {s(p_w2+1)}
    s_mov_b32 s10, {D*D*2}''')
    for n in range(4):
        vm.emit(f'buffer_load_dwordx4 {v(vx1)}, {s(sWS,4)}, {s(s_cnt)} offen offset:{1024*n} lds')
    A(f's_add_u32 m0, {s(s_t2)}, {L_X+4096}\ns_add_u32 {s(s_cnt)}, {s(s_cnt)}, 4096\ns_mov_b32 exec_hi, 0')
    vm.emit(f'buffer_load_dwordx4 {v(vx1)}, {s(sWS,4)}, {s(s_cnt)} offen lds')
    A('s_mov_b64 exec, -1')
    for g in range(4):
        A(f'''s_add_u32 {s(s_t)}, {s(s_q)}, {g}
        s_bfe_u32 {s(s_t2)}, {s(s_t)}, 0x10001
        s_add_u32 {s(s_t2)}, {s(s_t2)}, 1
        s_and_b32 {s(s_t)}, {s(s_t)}, 1
        s_lshl_b32 {s(s_t)}, {s(s_t)}, 1
        s_sub_u32 {s(s_t)}, {s(s_t)}, 1
        s_mul_i32 {s(s_t)}, {s(s_t)}, {s(s_t2)}
        v_add_u32 {v(TMP[0])}, {s(s_t)}, {v(vT)}
        s_lshl_b32 {s(s_t)}, {s(s_t)}, 4
        v_cmp_gt_u32 vcc, {S}, {v(TMP[0])}
        v_add_u32 {v(TMP[1])}, {s(s_t)}, {v(vSt)}
        v_mov_b32 {v(TMP[2])}, 0x7fff0000
        v_cndmask_b32 {v(SH[g])}, {v(TMP[2])}, {v(TMP[1])}, vcc''')
    A(f's_mul_i32 {s(s_jump)}, {s(s_q)}, {18*GP}\ns_add_u32 {s(s_jump)}, {s(s_jump)}, {TH}')
    def slot(i):
        r = [f's_cmp_ge_u32 {s(s_src)}, {576*1152}\ns_cselect_b32 {s(s_t2)}, {576*1152}, 0\ns_sub_u32 {s(s_src)}, {s(s_src)}, {s(s_t2)}\ns_add_u32 m0, {s(s_m)}, {RS*(i % NR)}\ns_nop 0']
        for m in range(3):
            r += [(f'buffer_load_dwordx4 {v(vDs)}, {s(sM,4)}, {s(s_src)} offen offset:{1024*m} lds', ('dma', i)),
                  f's_add_u32 {s(s_src)}, {s(s_src)}, {8*1152-1024 if m < 2 else 80*1152+2048}']
        return r
    def hl(k):
        r = [(f'buffer_load_dwordx4 {v(Y+4*k,4)}, {v(SH[k//9])}, {s(sWS,4)}, {s(s_jump)} offen', ('h', k)), f's_add_u32 {s(s_jump)}, {s(s_jump)}, {2*GP}']
        if k % 9 == 8: r.append(f's_cmp_eq_u32 {s(s_jump)}, {TH+TSZ}\ns_cselect_b32 {s(s_jump)}, {TH}, {s(s_jump)}')
        return r
    s0 = slot(0); sched = [s0[:3], s0[3:5], s0[5:]]
    for i in range(6):
        p = slot(i+1) if i < 5 else None
        if i == 4: first5 = len(sched)
        for n in range(3):
            if p: sched.append([p[:3], p[3:5], p[5:]][n])
            sched += [hl(6*i+2*n), hl(6*i+2*n+1)]
    WL = int(os.environ.get('WL', 14))
    for grp in sched[:WL]:
        vm.throttle()
        for ln in grp: vm.emit(ln)
    A(f'''v_and_b32 {v(TMP[0])}, 19, {v(vln)}
    v_min_u32 {v(TMP[0])}, 3, {v(TMP[0])}
    v_lshlrev_b32 {v(TMP[0])}, 3, {v(TMP[0])}
    v_lshrrev_b32 {v(TMP[1])}, 5, {v(vln)}
    v_bfe_u32 {v(TMP[2])}, {v(vln)}, 2, 2
    v_lshl_add_u32 {v(TMP[2])}, {v(TMP[1])}, 3, {v(TMP[2])}
    v_lshl_add_u32 {v(TMP[0])}, {v(TMP[2])}, 5, {v(TMP[0])}
    v_add_u32 {v(vB)}, {L_X}, {v(TMP[0])}
    v_lshlrev_b32 {v(vx0)}, 4, {v(vT)}
    v_lshl_add_u32 {v(vx0)}, {v(TMP[1])}, 3, {v(vx0)}
    s_lshl_b32 {s(s_cnt)}, {s(s_sig)}, 1
    s_add_u32 {s(s_cnt)}, {s(s_cnt)}, {s(s_c)}''')
    for ln in abase(vA0, 8, TMP[0], TMP[1]): A(ln)
    def rd(k):
        b = AF + 4*(k % 4); o = (k % 30)*2048; mb = MB+4*(k % 4)
        return [f'ds_read_b64_tr_b16 {v(b,2)}, {v(vA0)} offset:{o}', f'ds_read_b64_tr_b16 {v(b+2,2)}, {v(vA0)} offset:{o+512}',
                f'ds_read_b64_tr_b16 {v(mb,2)}, {v(vB)} offset:{512*k}', f'ds_read_b64_tr_b16 {v(mb+2,2)}, {v(vB)} offset:{512*k+128}']
    if not TAIL: stamp(A, 1)
    vm.wait(('dma', 0)); A('s_barrier')
    for k in range(3):
        for ln in rd(k): A(ln)
    tail = [[f'v_lshlrev_b32 {v(TMP[0])}, 2, {v(vT)}', f's_mov_b32 {s(s_t)}, {ST}', f'buffer_load_dword {v(M0)}, {v(TMP[0])}, {s(sWS,4)}, {s(s_t)} offen'],
            [f's_mov_b32 {s(s_t)}, {ST+8192}', f'buffer_load_dword {v(R0)}, {v(TMP[0])}, {s(sWS,4)}, {s(s_t)} offen'],
            [f's_lshl_b32 {s(s_t)}, {s(s_cnt)}, 17\ns_add_u32 {s(s_t)}, {s(s_t)}, {TX}', f'buffer_load_dwordx4 {v(XR,4)}, {v(vSt)}, {s(sWS,4)}, {s(s_t)} offen'],
            [f's_add_u32 {s(s_t)}, {s(s_t)}, {2*GP}', f'buffer_load_dwordx4 {v(XR+4,4)}, {v(vSt)}, {s(sWS,4)}, {s(s_t)} offen'],
            [f's_lshl_b32 {s(s_t)}, {s(s_sig)}, 15\ns_add_u32 {s(s_t)}, {s(s_t)}, {TX+64*GP}', (f'buffer_load_dwordx2 {v(XR+8,2)}, {v(vx0)}, {s(sWS,4)}, {s(s_t)} offen', 'x')]]
    rest = sched[WL:] + tail; ri = 0
    for k in range(36):
        vm.wait(('h', k))
        A(f's_waitcnt lgkmcnt({4*min(2, 35-k)})')
        A(f'v_mfma_f32_32x32x16_bf16 {v(ACC[0],16)}, {v(AF+4*(k%4),4)}, {v(Y+4*k,4)}, ' + ('0' if k == 0 else v(ACC[0],16)))
        upto = min(len(rest), (3*(k+1)+1)//2)
        if k <= 9: upto = min(upto, first5 - WL)
        for grp in rest[ri:upto]:
            vm.throttle(int(os.environ.get('THR2', 8)))
            for ln in grp: vm.emit(ln)
        ri = max(ri, upto)
        A(f'v_mfma_f32_32x32x16_bf16 {v(ACC[1],16)}, {v(MB+4*(k%4),4)}, {v(Y+4*k,4)}, ' + ('0' if k == 0 else v(ACC[1],16)))
        if k % 6 == 3 and k < 33:
            vm.wait(('dma', k//6+1)); A('s_barrier')
        if k+3 < 36:
            for ln in rd(k+3): A(ln)
    assert ri == len(rest)
    vm.wait('x')
    a0, a1 = ACC
    A(f'''s_lshl_b32 {s(s_st)}, {s(s_cnt)}, 17
    s_add_u32 {s(s_st)}, {s(s_st)}, {TY}
    s_lshr_b32 {s(s_t)}, {s(s_cnt)}, 2
    s_lshl_b32 {s(s_t)}, {s(s_t)}, 15
    s_and_b32 {s(s_cnt)}, {s(s_cnt)}, 3
    s_lshl_b32 {s(s_cnt)}, {s(s_cnt)}, 2
    s_add_u32 {s(s_cnt)}, {s(s_cnt)}, {s(s_t)}
    s_add_u32 {s(s_cnt)}, {s(s_cnt)}, {SQ}
    s_lshl_b32 {s(s_t)}, {s(s_sig)}, 15
    s_add_u32 {s(s_t)}, {s(s_t)}, {TY + 64*GP}
    s_cmp_eq_u32 {s(s_sig)}, 0
    s_mov_b32 {s(s_t2)}, 0x40000000
    s_cselect_b32 {s(s_t2)}, {MEAN}, {s(s_t2)}
    v_mul_f32 {v(TMP[3])}, {v(M0)}, {v(R0)}
    v_mov_b32 {v(SQa)}, 0
    v_permlane32_swap_b32 {v(XR)}, {v(XR+2)}
    v_permlane32_swap_b32 {v(XR+1)}, {v(XR+3)}
    v_permlane32_swap_b32 {v(XR+4)}, {v(XR+6)}
    v_permlane32_swap_b32 {v(XR+5)}, {v(XR+7)}
    v_add_f32 {v(TMP[2])}, {v(a1+4)}, {v(a1+5)}
    v_add_f32 {v(TMP[1])}, {v(a1+4)}, {v(a1+5)}
    s_barrier
    s_cmp_eq_u32 {s(s_c)}, 1
    v_permlane32_swap_b32 {v(TMP[2])}, {v(TMP[1])}''')
    def elem(a, xr, odd):
        A(f'v_and_b32 {v(TMP[0])}, 0xffff0000, {v(xr)}' if odd else f'v_lshlrev_b32 {v(TMP[0])}, 16, {v(xr)}')
        A(f'''v_fma_f32 {v(TMP[1])}, {v(TMP[0])}, {v(R0)}, -{v(TMP[3])}
        v_sub_f32 {v(a)}, {v(a)}, {v(TMP[2])}
        v_add_f32 {v(a)}, {v(a)}, {v(TMP[1])}
        v_fmac_f32 {v(SQa)}, {v(a)}, {v(a)}''')
    nox = A.label('nox')
    A(f's_cbranch_scc1 {nox}')
    for i in range(4): elem(a1+i, XR+8+i//2, i & 1)
    A(f'''v_cvt_pk_bf16_f32 {v(a1)}, {v(a1)}, {v(a1+1)}
    v_cvt_pk_bf16_f32 {v(a1+1)}, {v(a1+2)}, {v(a1+3)}
    v_lshlrev_b32 {v(TMP[1])}, 2, {v(vT)}
    buffer_store_dwordx2 {v(a1,2)}, {v(vx0)}, {s(sWS,4)}, {s(s_t)} offen sc1
    buffer_store_dword {v(TMP[2])}, {v(TMP[1])}, {s(sWS,4)}, {s(s_t2)} offen sc1
    {nox}:''')
    for i in range(16): elem(a0+i, XR+i//2, i & 1)
    A(f'v_mov_b32 {v(TMP[0])}, {v(SQa)}')
    for ln in pack_store_T(a0, s_st, 'sc1'): A(ln)
    A(f'''v_permlane32_swap_b32 {v(TMP[0])}, {v(SQa)}
    v_lshlrev_b32 {v(TMP[1])}, 4, {v(vT)}
    v_add_f32 {v(TMP[0])}, {v(TMP[0])}, {v(SQa)}
    buffer_store_dword {v(TMP[0])}, {v(TMP[1])}, {s(sWS,4)}, {s(s_cnt)} offen sc1
    s_lshl_b32 {s(s_t)}, {s(s_rbw)}, 3
    s_add_u32 {s(s_t)}, {s(s_t)}, {s(s_sig)}
    s_lshl_b32 {s(s_t)}, {s(s_t)}, 2
    s_add_u32 {s(s_t)}, {s(s_t)}, {s(s_w)}
    s_lshl_b32 {s(s_t)}, {s(s_t)}, 2
    s_add_u32 {s(s_t)}, {s(s_t)}, {YF}
    s_waitcnt vmcnt(0)''')
    flag_store(A, s_t, TMP[0], TMP[1])

def gen_main(A, stflag, li):
    vm = VM(A)
    P3, P4 = 9216, 1152
    NSL = 19; NG = 6*NSL; NK = 36*NSL
    s_z, s_zs, s_of, s_pf, s_pa, s_oo = 36, 37, 38, 39, 46, 47
    p_wo, p_out = 48, 50
    vD4 = Y+3; vSy = vA1; vX0 = 0; vX1 = Y; vD5 = vDs
    PD = int(os.environ.get('PD', 4)); AFB = [AF, AF+4, AF+8, AF+12, vSt][:PD+1]
    def slab_of(t, dst):
        if t == 0: return [f's_mov_b32 {s(dst)}, 8']
        return [f's_add_u32 {s(dst)}, {s(s_j)}, {t % 8}', f's_and_b32 {s(dst)}, {s(dst)}, 7']
    def piece(g, m):
        i = g % 6; n = 3*i + m
        r = [f's_add_u32 m0, {s(s_m)}, {(g % NR)*RS}'] if m == 0 else []
        comp = 2048 if m == 0 else -1024
        if g < 54:
            inc = 8*P3-1024 if m else (80*P3+2048 + (128-576*P3 if i == 0 else 0))
            r.append(f's_add_u32 {s(s_src)}, {s(s_src)}, {inc & 0xffffffff}' if (g, m) != (0, 0) else 's_nop 0')
            return r + [(f'buffer_load_dwordx4 {v(vDs)}, {s(sM,4)}, {s(s_src)} offen offset:{1024*m} lds', ('slot', g))]
        if g < 108:
            r.append(f's_add_u32 {s(s_src)}, {s(s_src)}, {((16 if n % 2 else 48)*P4 + comp) & 0xffffffff}' if n else f's_mov_b32 {s(s_src)}, {s(s_jump)}')
            return r + [(f'buffer_load_dwordx4 {v(vD4)}, {s(sX,4)}, {s(s_src)} offen offset:{1024*m} lds', ('slot', g))]
        if n == 0: r.append(f's_mov_b32 {s(s_src)}, {s(s_jump)}')
        elif n < 14: r.append(f's_add_u32 {s(s_src)}, {s(s_src)}, {(18*P4 + comp) & 0xffffffff}')
        elif n == 14: r.append(f's_mov_b32 {s(s_src)}, {s(s_z)}')
        else: r.append(f's_add_u32 {s(s_src)}, {s(s_src)}, {s(s_zs)}' + (f'\ns_add_u32 {s(s_src)}, {s(s_src)}, 3072' if m == 0 else ''))
        return r + [(f'buffer_load_dwordx4 {v(vD4 if n < 14 else vD5)}, {s(sM,4)}, {s(s_src)} offen offset:{1024*m} lds', ('slot', g))]
    A(f's_load_dwordx2 {s(p_wo,2)}, s[0:1], {ARG["wo"]}\ns_load_dwordx2 {s(p_out,2)}, s[0:1], {ARG["out"]}')
    A(f's_mul_i32 {s(s_t)}, {s(s_w)}, 24')
    matrix_lane_offsets(A, vDs, P3, s_t)
    A(f"""s_mov_b32 s8, {s(p_w3)}
    s_mov_b32 s9, {s(p_w3+1)}
    s_mov_b32 s10, {D*F*2}
    s_mul_i32 {s(s_src)}, {s(s_j)}, 1152""")
    for g in range(NR-1):
        for m in range(3):
            for ln in piece(g, m): vm.emit(ln)
    token_regs(A, s_rb)
    for ln in abase(vA0, 8, TMP[0], TMP[1]): A(ln)
    if not TAIL: stamp(A, 2)
    A(f's_lshl_b32 {s(s_t)}, {s(s_rb)}, 7\ns_add_u32 {s(s_of)}, {s(s_t)}, {OF}\ns_add_u32 {s(s_t)}, {s(s_t)}, {YF}')
    poll(A, s_t, TMP[0], TMP[1], s_t2)
    if not TAIL: stamp(A, 3)
    A(f's_mov_b32 {s(s_cur)}, {TY}\nv_mov_b32 {v(vSy)}, {v(vSt)}')
    def yload(k): return [(f'buffer_load_dwordx4 {v(Y+4*k,4)}, {v(vSy)}, {s(sWS,4)}, {s(s_cur)} offen sc1', ('y', k)), f's_add_u32 {s(s_cur)}, {s(s_cur)}, {2*GP}']
    YA = int(os.environ.get('YA', 6))
    for k in range(YA):
        for ln in yload(k): vm.emit(ln)
    A(f"""v_lshrrev_b32 {v(TMP[0])}, 5, {v(vln)}
    v_lshlrev_b32 {v(TMP[0])}, 16, {v(TMP[0])}
    v_lshl_add_u32 {v(vc1)}, {v(vT)}, 4, {v(TMP[0])}
    s_mov_b32 {s(s_sig)}, {SQ}
    s_mov_b32 {s(s_rbw)}, {SQ+GP}
    s_lshl_b32 {s(s_t)}, {s(s_w)}, 12
    s_add_u32 {s(s_t)}, {s(s_t)}, {L_STASH}
    v_lshl_add_u32 {v(vX0)}, {v(vln)}, 4, {s(s_t)}
    s_mov_b32 s4, {s(p_w4)}
    s_mov_b32 s5, {s(p_w4+1)}
    s_mov_b32 s6, {D*F*2}
    s_lshl_b32 {s(s_t)}, {s(s_c)}, 17
    s_add_u32 {s(s_pa)}, {s(s_t)}, {PART}
    s_mul_i32 {s(s_pf)}, {s(s_rb)}, {9*128}
    s_add_u32 {s(s_pf)}, {s(s_pf)}, {PF}
    s_lshl_b32 {s(s_t)}, {s(s_j)}, 4
    s_add_u32 {s(s_pb)}, {s(s_pf)}, {s(s_t)}
    s_lshl_b32 {s(s_t)}, {s(s_w)}, 2
    s_add_u32 {s(s_pb)}, {s(s_pb)}, {s(s_t)}
    s_waitcnt lgkmcnt(0)""")
    sqld = [(f'buffer_load_dwordx4 {v(OWNR+4*i,4)}, {v(vc1)}, {s(sWS,4)}, {s((s_sig, s_rbw)[i])} offen sc1', 'sq') for i in range(2)]
    rstd = [f'v_add_f32 {v(OWNR)}, {v(OWNR)}, {v(OWNR+i)}' for i in range(1, 8)] + f"""v_mov_b32 {v(OWNR+1)}, {v(OWNR)}
    v_mov_b32 {v(TMP[0])}, {f32(1e-5)}
    s_nop 0
    v_permlane32_swap_b32 {v(OWNR)}, {v(OWNR+1)}
    v_add_f32 {v(OWNR)}, {v(OWNR)}, {v(OWNR+1)}
    v_fmac_f32 {v(TMP[0])}, {f32(1.0/D)}, {v(OWNR)}
    v_rsq_f32 {v(TMP[1])}, {v(TMP[0])}
    v_sqrt_f32 {v(vir)}, {v(TMP[0])}
    s_nop 0
    v_mul_f32 {v(vc1)}, {f32(C1)}, {v(TMP[1])}
    v_mul_f32 {v(vc2)}, {v(TMP[1])}, {v(TMP[1])}
    v_mul_f32 {v(vc2)}, {v(vc2)}, {v(TMP[1])}
    v_mul_f32 {v(vc2)}, {f32(C2)}, {v(vc2)}""".split('\n')
    own = {0: Y+8, 1: Y+16, 8: Y+88}; own.update({t: OWNR+8*(t-2) for t in range(2, 8)})
    par = {t: Y+24+8*t for t in range(8)}; par[8] = Y+96
    vK, vP, vOne, vOff, vS2 = Y+1, Y+2, Y+4, Y+5, vA1
    T0, T1 = Y+6, Y+7; vZ = vP
    XF = [Y+104, Y+108, Y+112]; E0, E1, E8 = Y+116, Y+120, Y+124; RA = Y+128
    vWx, vFl, vF1, vPx, vYx, vMe, vOut, vFv = vA0, vc1, vc2, vir, TMP[0], TMP[1], TMP[2], TMP[3]
    GA = 12; GF = int(os.environ.get('GF', 16)); OA = int(os.environ.get('OA', 8))
    def oreg(n): return own[n//2] + 4*(n & 1)
    def breg(k):
        n = 3*(k//6) + k % 3
        return (par if k % 6 >= 3 else own)[n//2] + 4*(n & 1)
    def rdA(K):
        g = K//6; b = AFB[K % (PD+1)]; pos = (g % NR)*RS
        if K < 324:
            o = pos + (K % 6)*2048
            return [f'ds_read_b64_tr_b16 {v(b,2)}, {v(vA0)} offset:{o}', f'ds_read_b64_tr_b16 {v(b+2,2)}, {v(vA0)} offset:{o+512}']
        o = pos + (K % 3)*1024; base = vP if K % 6 >= 3 else vK
        if K >= 648: o = pos + ((K % 6)//2)*1024; base = vZ if K & 1 else vK
        return [f'ds_read_b64_tr_b16 {v(b,2)}, {v(base)} offset:{o}', f'ds_read_b64_tr_b16 {v(b+2,2)}, {v(base)} offset:{o+3072}']
    def rdX(n):
        b = XF[n % 3]
        return [f'ds_read_b64_tr_b16 {v(b,2)}, {v(vWx)} offset:{256*n}', f'ds_read_b64_tr_b16 {v(b+2,2)}, {v(vWx)} offset:{256*n+64}']
    vm.wait(('slot', 0)); A('s_barrier')
    for K in range(PD):
        for ln in rdA(K): A(ln)
    if not TAIL: stamp(A, 4)
    A(f"s_setprio {os.environ.get('PM1', 3)}")
    def set_flag(t):
        return slab_of(t, s_t) + [f's_lshl_b32 {s(s_t)}, {s(s_t)}, 7', f's_add_u32 {s(s_t)}, {s(s_t)}, {s(s_pb)}',
                                  f'buffer_store_dword {v(vOne)}, {v(vOff)}, {s(sWS,4)}, {s(s_t)} offen sc1']
    def xw(ts): return [f'ds_write_b128 {v(vX0)}, {v(own[t]+4*hf,4)} offset:{2048*i+1024*hf}' for i, t in enumerate(ts) for hf in range(2)]
    def xr(ts, dst, base): return [f'ds_read_b128 {v(dst[t]+4*hf,4)}, {v(base)} offset:{2048*i+1024*hf}' for i, t in enumerate(ts) for hf in range(2)]
    def epilogue(tp):
        e = [x.replace(f', {v(vSt)},', f', {v(vS2)},') for x in pack_store_T(ACC[(tp+1) & 1], s_st, stflag)]
        e[-2] = (e[-2], ('st', tp))
        return slab_of(tp, s_st) + [f's_lshl_b32 {s(s_st)}, {s(s_st)}, 18', f's_add_u32 {s(s_st)}, {s(s_st)}, {s(s_pa)}',
                                    f's_mul_i32 {s(s_t2)}, {s(s_j)}, {TSZ}', f's_add_u32 {s(s_st)}, {s(s_st)}, {s(s_t2)}'] + e[:-1]
    def flag_check(reg, soff_lines, soff, addr):
        ok, lp = A.label('fok'), A.label('fwait')
        return '\n'.join([f'v_lshrrev_b32 {v(T0)}, 30, {v(addr)}', f'v_or_b32 {v(T1)}, {v(T0)}, {v(reg)}', f'v_cmp_ne_u32 vcc, 1, {v(T1)}',
                          f's_cbranch_vccz {ok}'] + soff_lines + [f's_mov_b32 {s(s_t2)}, 0', f'{lp}:', 's_sleep 2',
                          f'buffer_load_dword {v(reg)}, {v(addr)}, {s(sWS,4)}, {s(soff)} offen sc1', f's_add_u32 {s(s_t2)}, {s(s_t2)}, 1', 's_waitcnt vmcnt(0)',
                          f'v_or_b32 {v(T1)}, {v(T0)}, {v(reg)}', f'v_cmp_ne_u32 vcc, 1, {v(T1)}', f's_cbranch_vccz {ok}',
                          f's_cmp_lt_u32 {s(s_t2)}, 0x40000', f's_cbranch_scc1 {lp}', f'{ok}:'])
    B0 = 6-PD
    win = lambda n: (B0+6*n+1, B0+6*n+7-PD)
    for sl in range(NSL):
        ph2 = sl >= 9; t = sl - 9
        fills = []
        if sl == 0:
            for k in range(YA, 36): fills.append((k-YA, k-YA+1, yload(k)))
            fills.append((36-YA, 37-YA, sqld))
        if sl == 1:
            fills.append((0, 3, [('WAIT', 'sq')] + rstd))
        if 1 <= sl <= 9:
            p = sl-1; a = ACC[p & 1]
            if p < 2:
                f = gelu_pack(a, a) + [f'ds_write_b128 {v(vX0)}, {v(a,4)} offset:{2048*p}', f'ds_write_b128 {v(vX0)}, {v(a+4,4)} offset:{2048*p+1024}']
            else:
                f = gelu_pack(a, own[p])
            fills.append((3, 36-PD if sl < 9 else 21, f))
        if 8 <= sl <= 16:
            fills.append((9, 11, slab_of(sl-8, s_jump) + [f's_lshl_b32 {s(s_jump)}, {s(s_jump)}, 7', f's_mul_i32 {s(s_t)}, {s(s_j)}, {576*P4}', f's_add_u32 {s(s_jump)}, {s(s_jump)}, {s(s_t)}']))
        if sl == 8:
            f = [f's_lshl_b32 {s(s_t)}, {s(s_c)}, 5', f's_lshl_b32 {s(s_t2)}, {s(s_r)}, 3', f's_add_u32 {s(s_t)}, {s(s_t)}, {s(s_t2)}'] + \
                [x.replace(v(TMP[0]), v(T0)).replace(v(TMP[1]), v(T1)) for x in lines(lambda B: matrix_lane_offsets(B, vD4, P4, s_t))]
            fills.append((3, 9, f))
            fills.append((11, 20, abase(vK, 4, T0, T1) + [f's_mul_i32 {s(s_t)}, {s(s_c)}, 6144', f'v_add_u32 {v(vK)}, {s(s_t)}, {v(vK)}', f'v_xor_b32 {v(vP)}, 6144, {v(vK)}']))
            fills.append((1, 3, [f's_lshl_b32 {s(s_t)}, {s(s_c)}, 14', f's_sub_u32 {s(s_t)}, 8192, {s(s_t)}', f'v_add_u32 {v(vX1)}, {s(s_t)}, {v(vX0)}']))
            fills.append((6, 10, xr((0, 1), own, vX0)))
            fills.append((10, win(1)[1], xr((0, 1), par, vX1)))
            fills.append(win(2) + (xw((2, 3)),)); fills.append(win(3) + (xr((2, 3), par, vX1),))
            fills.append(win(4) + (xw((4, 5)),)); fills.append((win(5)[0], min(36, win(5)[1]), xr((4, 5), par, vX1)))
        if sl == 9:
            fills.append((0, 1, [f"s_setprio {os.environ.get('PM2', 3)}"]))
            fills.append(win(0) + (xw((6, 7)),)); fills.append(win(1) + (xr((6, 7), par, vX1),))
            fills.append(win(3) + (xw((8,)),)); fills.append(win(4) + (xr((8,), par, vX1),))
            fills.append((24, 27, flag_regs(vOne, vOff)))
        if 1 <= t <= 8:
            fills.append((4, 16, epilogue(t-1)))
        if 1 <= t <= 8:
            fills.append((31, 33, [('WAIT', ('st', t-1))] + set_flag(t-1)))
        if sl == 10:
            f = f"""v_and_b32 {v(T0)}, 31, {v(vln)}
            v_lshrrev_b32 {v(T1)}, 5, {v(vln)}
            v_lshlrev_b32 {v(T1)}, 3, {v(T1)}
            v_sub_u32 {v(T1)}, {v(T0)}, {v(T1)}
            v_ashrrev_i32 {v(T1)}, 1, {v(T1)}
            v_lshrrev_b32 {v(vMe)}, 1, {v(T0)}
            v_and_b32 {v(T0)}, 1, {v(T0)}
            v_lshlrev_b32 {v(T0)}, 4, {v(T0)}
            v_mov_b32 {v(vFl)}, 0x3f80
            v_lshlrev_b32 {v(T0)}, {v(T0)}, {v(vFl)}""".split('\n')
            for E, src, off in ((E0, T1, 0), (E1, T1, 8), (E8, vMe, 0)):
                for d in range(4): f.append(f'v_cmp_eq_u32 vcc, {d+off}, {v(src)}\ns_nop 1\nv_cndmask_b32 {v(E+d)}, 0, {v(T0)}, vcc')
            fills.append((20, 34, f))
        if sl == 11:
            f = f"""v_lshrrev_b32 {v(T0)}, 5, {v(vln)}
            v_bfe_u32 {v(T1)}, {v(vln)}, 2, 2
            v_lshl_add_u32 {v(T1)}, {v(T0)}, 3, {v(T1)}
            v_and_b32 {v(vWx)}, 1, {v(vln)}
            v_lshlrev_b32 {v(vWx)}, 3, {v(vWx)}
            v_lshl_add_u32 {v(vWx)}, {v(T1)}, 4, {v(vWx)}
            s_mul_i32 {s(s_t)}, {s(s_c)}, {18*256}
            s_add_u32 {s(s_t)}, {s(s_t)}, {L_STASH}
            v_add_u32 {v(vWx)}, {s(s_t)}, {v(vWx)}
            v_and_b32 {v(T1)}, 0x7fff, {v(vS2)}
            s_lshl_b32 {s(s_t)}, {s(s_c)}, 30
            v_or_b32 {v(T1)}, {s(s_t)}, {v(T1)}
            s_mov_b32 {s(s_t)}, {TSZ}
            v_mad_u32_u24 {v(vPx)}, {v(T0)}, {s(s_t)}, {v(T1)}
            s_mov_b32 {s(s_t)}, {TX-TY}
            v_mad_u32_u24 {v(vYx)}, {v(T0)}, {s(s_t)}, {v(T1)}
            v_and_b32 {v(T1)}, 0x7fff, {v(vS2)}
            v_mul_u32_u24 {v(vOut)}, 72, {v(T1)}
            v_lshrrev_b32 {v(vMe)}, 2, {v(T1)}
            v_lshlrev_b32 {v(vFl)}, 30, {v(T0)}
            v_lshl_add_u32 {v(vFl)}, {v(vln)}, 2, {v(vFl)}
            v_lshrrev_b32 {v(T1)}, 2, {v(vln)}
            v_min_u32 {v(T1)}, 1, {v(T1)}
            v_lshlrev_b32 {v(T1)}, 30, {v(T1)}
            v_lshl_add_u32 {v(vF1)}, {v(vln)}, 2, {v(T1)}
            s_mov_b32 {s(s_t)}, {MEAN}""".split('\n')
            fills.append((20, 30, f + [(f'buffer_load_dword {v(vMe)}, {v(vMe)}, {s(sWS,4)}, {s(s_t)} offen sc1', 'me')]))
        def gload(lines_, tag, dst):
            return lines_ + [(f'buffer_load_dwordx4 {v(dst,4)}, {v(vS2)}, {s(sWS,4)}, {s(s_cur)} offen sc1', tag), f's_add_u32 {s(s_cur)}, {s(s_cur)}, {2*GP}',
                             (f'buffer_load_dwordx4 {v(dst+4,4)}, {v(vS2)}, {s(sWS,4)}, {s(s_cur)} offen sc1', tag)]
        def gadd(tag, src_, acc, first=False):
            return [('WAIT', tag), f'v_mfma_f32_32x32x16_bf16 {v(acc,16)}, {v(E0,4)}, {v(src_,4)}, ' + ('0' if first else v(acc,16)),
                    f'v_mfma_f32_32x32x16_bf16 {v(acc,16)}, {v(E1,4)}, {v(src_+4,4)}, {v(acc,16)}']
        own_base = [f's_lshl_b32 {s(s_cur)}, {s(s_j)}, 18', f's_add_u32 {s(s_cur)}, {s(s_cur)}, {s(s_pa)}']
        def sib(tp, dst): return [f's_sub_u32 {s(dst)}, {s(s_j)}, {tp}', f's_and_b32 {s(dst)}, {s(dst)}, 7']
        def sib_flag(tp): return sib(tp, s_rbw) + [f's_lshl_b32 {s(s_rbw)}, {s(s_rbw)}, 4', f's_lshl_b32 {s(s_sig)}, {s(s_j)}, 7', f's_add_u32 {s(s_rbw)}, {s(s_rbw)}, {s(s_sig)}',
                                                   f's_add_u32 {s(s_rbw)}, {s(s_rbw)}, {s(s_pf)}', (f'buffer_load_dword {v(vFv)}, {v(vF1)}, {s(sWS,4)}, {s(s_rbw)} offen sc1', ('sf', tp))]
        def sib_src(tp): return [('WAIT', ('sf', tp)), flag_check(vFv, [], s_rbw, vF1)] + sib(tp, s_sig) + [f's_mul_i32 {s(s_sig)}, {s(s_sig)}, {TSZ}'] + own_base + \
                                [f's_add_u32 {s(s_cur)}, {s(s_cur)}, {s(s_sig)}']
        if t == 2:
            fills.append((0, 2, gload(own_base + [f's_add_u32 {s(s_cur)}, {s(s_cur)}, {(TY-PART) & 0xffffffff}'], 'gy', XF[0])))
            fills.append((16, 17, gadd('gy', XF[0], RA, True)))
            fills.append((30, 31, gload(own_base + [f's_add_u32 {s(s_cur)}, {s(s_cur)}, {(TX-PART) & 0xffffffff}'], ('gp', 0), XF[0])))
        gdst = lambda tp: XF[0] if tp < 6 else par[tp-6]
        if 3 <= t <= 9:
            fills.append((GA, GA+1, gadd(('gp', t-3), gdst(t-3), RA if t < 8 else ACC[1])))
            fills.append((GF, GF+2, sib_flag(t-2)))
            fills.append((GF+14, GF+15, gload(sib_src(t-2), ('gp', t-2), gdst(t-2))))
        if sl == 13:
            f = [f's_mul_i32 {s(s_t2)}, {s(s_w)}, 2304', f's_mul_i32 {s(s_t)}, {s(s_j)}, 9216', f's_add_u32 {s(s_t)}, {s(s_t)}, {s(s_t2)}', f's_add_u32 {s(s_z)}, {s(s_t)}, {WOX}',
                 f'v_lshlrev_b32 {v(T0)}, 4, {v(vln)}', f'v_lshlrev_b32 {v(T1)}, 2, {v(vln)}']
            fills.append((20, 23, f))
            f = [f's_mul_i32 {s(s_t2)}, {s(s_w)}, 2304\ns_mov_b32 {s(s_zs)}, m0\ns_add_u32 m0, {s(s_t2)}, {L_STASH}\ns_nop 0',
                 (f'buffer_load_dwordx4 {v(T0)}, {s(sWS,4)}, {s(s_z)} offen lds', 'wx'), (f'buffer_load_dwordx4 {v(T0)}, {s(sWS,4)}, {s(s_z)} offen offset:1024 lds', 'wx'),
                 (f'buffer_load_dword {v(T1)}, {s(sWS,4)}, {s(s_z)} offen offset:2048 lds', 'wx'), f's_mov_b32 m0, {s(s_zs)}']
            fills.append((23, 24, f))
        if sl == 14:
            f = f"""v_lshrrev_b32 {v(T0)}, 3, {v(vln)}
            v_lshrrev_b32 {v(T1)}, 2, {v(T0)}
            v_mul_u32_u24 {v(T1)}, 68, {v(T1)}
            v_add_u32 {v(T1)}, {v(T1)}, {v(T0)}
            v_and_b32 {v(T0)}, 2, {v(T0)}
            v_lshl_add_u32 {v(T1)}, {v(T0)}, 3, {v(T1)}
            v_mul_u32_u24 {v(T1)}, {P4}, {v(T1)}
            v_lshlrev_b32 {v(T0)}, 1, {v(T0)}
            v_xor_b32 {v(T0)}, {v(T0)}, {v(vln)}
            v_and_b32 {v(T0)}, 7, {v(T0)}
            v_lshl_add_u32 {v(T1)}, {v(T0)}, 4, {v(T1)}
            v_mov_b32 {v(T0)}, {s(s_c)}
            v_cmp_eq_u32 vcc, 1, {v(T0)}\\ns_nop 1\\nv_cndmask_b32 {v(vD5)}, {v(vD4)}, {v(T1)}, vcc
            s_mul_i32 {s(s_z)}, {s(s_r)}, {36*P4}
            s_add_u32 {s(s_z)}, {s(s_z)}, {16*P4}
            s_cmp_eq_u32 {s(s_c)}, 1\\ns_cselect_b32 {s(s_z)}, {s(s_z)}, {14*18*P4}\\ns_mov_b32 {s(s_zs)}, {18*P4-1024}\\ns_cselect_b32 {s(s_zs)}, {144*P4-1024}, {s(s_zs)}
            s_lshl_b32 {s(s_t)}, {s(s_j)}, 7
            s_add_u32 {s(s_z)}, {s(s_z)}, {s(s_t)}
            s_sub_u32 {s(s_z)}, {s(s_z)}, 2048
            s_mov_b32 s8, {s(p_wo)}
            s_mov_b32 s9, {s(p_wo+1)}
            s_mov_b32 s10, {D*D*2}""".split('\n')
            fills.append((18, 29, [x.replace('\\n', '\n') for x in f]))
        def oload(n): return [(f'buffer_load_dwordx4 {v(oreg(n),4)}, {v(vS2)}, {s(sWS,4)}, {s(s_oo)} offen sc1', ('o', n)), f's_add_u32 {s(s_oo)}, {s(s_oo)}, {2*GP}']
        if sl == 16:
            fills.append((2, 3, [f's_add_u32 {s(s_oo)}, {s(s_pf)}, 1024', (f'buffer_load_dword {v(XF[2])}, {v(vFl)}, {s(sWS,4)}, {s(s_oo)} offen sc1', 'f8')]))
            fills.append((19, 20, [('WAIT', 'f8'), flag_check(XF[2], [], s_oo, vFl)]))
        if sl == 17:
            fills.append((9, 11, [f's_mul_i32 {s(s_jump)}, {s(s_c)}, {(324-32)*P4}', f's_lshl_b32 {s(s_t)}, {s(s_j)}, 7', f's_add_u32 {s(s_jump)}, {s(s_jump)}, {s(s_t)}']))
            fills.append((3, 4, [(f'buffer_load_dword {v(XF[2])}, {v(vFl)}, {s(sWS,4)}, {s(s_of)} offen sc1', 'of')]))
            fills.append((19, 20, [('WAIT', 'of'), flag_check(XF[2], [], s_of, vFl), f's_mul_i32 {s(s_oo)}, {s(s_c)}, {36*GP}', f's_add_u32 {s(s_oo)}, {s(s_oo)}, {TO}']))
            for n in range(OA): fills.append((20+2*n, 21+2*n, oload(n)))
            fills.append((36-PD, 37-PD, [f'v_xor_b32 {v(vZ)}, 64, {v(vK)}']))
            assert ABL or vm.done >= vm.tag['wx']
        if sl == 18:
            for n in range(OA, 18): fills.append((2*(n-OA), 2*(n-OA)+1, oload(n)))
            extras = []
            f = []
            for p in range(5):
                f += [f's_lshl_b32 {s(s_cur)}, {s(s_j)}, 15', f's_add_u32 {s(s_cur)}, {s(s_cur)}, {(PART+2*p*TSZ if p < 4 else TY) + 64*GP}',
                      (f'buffer_load_dwordx4 {v(par[2+p],4)}, {v(vPx if p < 4 else vYx)}, {s(sWS,4)}, {s(s_cur)} offen sc1', ('x', p))]
                extras.append(p)
            fills.append((4, 14, f))
        prog = [0]*len(fills)
        epi = next((i for i, f in enumerate(fills) if f[:2] == (4, 16)), -1)
        for k in range(36):
            K = 36*sl + k; g = K//6
            nout = min(PD-1, NK-1-K)
            if sl == 0: vm.wait(('y', k))
            if sl == 18: vm.wait(('o', k//2))
            A(f's_waitcnt lgkmcnt({2*nout})')
            init = '0'
            if not ph2: acc, b, first = ACC[sl & 1], Y+4*k, k == 0
            elif t <= 8:
                acc, b, first = ACC[(t+1) & 1], breg(k), k == 0
                if t == 8: init = v(RA,16)
            else: acc, b, first = (RA if k & 1 else ACC[1]), oreg(k//2), k == 1
            A(f'v_mfma_f32_32x32x16_bf16 {v(acc,16)}, {v(AFB[K % (PD+1)],4)}, {v(b,4)}, ' + (init if first else v(acc,16)))
            xn = k//2
            if sl == 18 and k & 1:
                A(f'v_mfma_f32_32x32x16_bf16 {v(ACC[0],16)}, {v(XF[xn % 3],4)}, {v(b,4)}, ' + ('0' if k == 1 else v(ACC[0],16)))
            def do_fills(valu):
                for fi, (a, z, f) in enumerate(fills):
                    if 'g' in ABL and len(f) > 100: continue
                    if k >= a and (ORDER == 'old' or (len(f) > 100 or fi == epi) == valu):
                        upto = min(len(f), -(-len(f)*(k-a+1)//(z-a)))
                        for ln in f[prog[fi]:upto]:
                            if isinstance(ln, tuple) and ln[0] == 'WAIT': vm.wait(ln[1])
                            else: vm.emit(ln)
                        prog[fi] = upto
            if ORDER == 'vfirst': do_fills(True)
            if k % 6 == B0 and g+1 < NG:
                if 'v' not in ABL: vm.wait(('slot', g+1))
                if 'b' not in ABL: A('s_barrier')
            if sl == 18 and k & 1 and xn+2 < 18:
                for ln in rdX(xn+2): A(ln)
            if sl == 17 and k >= 34:
                for ln in rdX(k-34): A(ln)
            if K+PD < NK and 'r' not in ABL:
                for ln in rdA(K+PD): A(ln)
            if ORDER == 'mid': do_fills(True)
            ph = (k - B0) % 6; gg = (K - B0)//6 + NR-1
            if ph % 2 == 0 and NR-1 <= gg < NG:
                for ln in piece(gg, ph//2):
                    if 'd' not in ABL: vm.emit(ln)
            do_fills(False)
            if TAIL and (sl, k) in ((17, 0), (18, 5)): stamp(A, 3 if sl == 17 else 5)
        assert all(p == len(f[2]) for p, f in zip(prog, fills)) or ABL
        if not TAIL:
            if sl == 8: stamp(A, 5)
            if sl == 17: stamp(A, 6)
        elif sl in (8, 16, 17, 18): stamp(A, {8: 1, 16: 2, 17: 4, 18: 6}[sl])
    a1, a0 = ACC[1], ACC[0]
    for p in extras:
        vm.wait(('x', p))
        A(f'v_mfma_f32_32x32x16_bf16 {v(a0,16)}, {v(E8,4)}, {v(par[2+p],4)}, {v(a0,16)}')
    A(f"""s_mov_b32 s8, {s(p_out)}
    s_mov_b32 s9, {s(p_out+1)}
    s_mov_b32 s10, {S*D*2}
    v_lshrrev_b32 {v(T0)}, 5, {v(vln)}
    v_lshl_add_u32 {v(vS2)}, {v(T0)}, 4, {v(vOut)}
    v_lshl_add_u32 {v(vOut)}, {v(T0)}, 3, {v(vOut)}
    s_lshl_b32 {s(s_st)}, {s(s_j)}, 1
    s_add_u32 {s(s_st)}, {s(s_st)}, {s(s_c)}
    s_lshl_b32 {s(s_st)}, {s(s_st)}, 6
    s_lshl_b32 {s(s_t)}, {s(s_j)}, 4
    s_lshl_b32 {s(s_t2)}, {s(s_c)}, 30
    s_add_u32 {s(s_t)}, {s(s_t)}, {s(s_t2)}
    v_subrev_u32 {v(T0)}, {L_STASH}, {v(vX0)}
    v_subrev_u32 {v(T1)}, {L_STASH}, {v(vX1)}
    s_barrier""")
    for q in range(4): A(f'ds_write_b128 {v(vX0)}, {v(RA+4*q,4)} offset:{1024*q}')
    A(f'ds_write_b128 {v(T0)}, {v(a0,4)}')
    A('s_waitcnt lgkmcnt(0)\ns_barrier')
    for q in range(4): A(f'ds_read_b128 {v(RA+4*q,4)}, {v(vX1)} offset:{1024*q}')
    A(f'ds_read_b128 {v(XF[0],4)}, {v(T1)}')
    vm.wait(('gp', 7))
    for ln in gadd(None, par[1], a1)[1:]: A(ln)
    A('s_waitcnt lgkmcnt(0)')
    for i in range(4):
        A(f'v_add_f32 {v(a0+i)}, {v(a0+i)}, {v(XF[0]+i)}\nv_add_f32 {v(a0+i)}, {v(a0+i)}, {v(vMe)}')
    A(f"""v_cvt_pk_bf16_f32 {v(a0)}, {v(a0)}, {v(a0+1)}
    v_cvt_pk_bf16_f32 {v(a0+1)}, {v(a0+2)}, {v(a0+3)}
    buffer_store_dwordx2 {v(a0,2)}, {v(vOut)}, {s(sM,4)}, {s(s_t)} offen offset:1024 {os.environ.get('OST', 'sc1')}""")
    for i in range(16): A(f'v_add_f32 {v(a1+i)}, {v(a1+i)}, {v(RA+i)}')
    for i in range(16): A(f'v_add_f32 {v(a1+i)}, {v(a1+i)}, {v(vMe)}')
    for i in range(8): A(f'v_cvt_pk_bf16_f32 {v(a1+i)}, {v(a1+2*i)}, {v(a1+2*i+1)}')
    for a in range(2):
        b = a1+4*a
        A(f"""v_permlane32_swap_b32 {v(b)}, {v(b+2)}
        v_permlane32_swap_b32 {v(b+1)}, {v(b+3)}
        buffer_store_dwordx4 {v(b,4)}, {v(vS2)}, {s(sM,4)}, {s(s_st)} offen offset:{32*a} {os.environ.get('OST', 'sc1')}""")
    if STAMPS: A('s_waitcnt vmcnt(0)')
    stamp(A, 7)
    stamp_flush(A, STAMP + li*512*8*64, 2)
    A('s_endpgm')
```

```python
import sys
sys.path.insert(0, 'work')
from asmlib import *
from layout import *
import k1, att, mlp, k3, red

HEADER = open('parallel_sum__softmax_full_mha__mixer_s_mlp__prompt.s.ref').read().split('; Override launch')[0]

def build(stages):
    A = Asm(); launches = []; descs = []
    A('.amdgcn_target "amdgcn-amd-amdhsa--gfx950"')
    A('.text'); A('.p2align 8'); A('code_start:')
    for st in stages:
        g = st(A)
        launches += g['launch']; descs += g['desc']
    A('.text'); A('code_end:')
    A('.fill 64, 4, 0xbf800000')
    hdr = HEADER + ''.join(f'; @launch kernel={k} grid=({g},1,1) block=({b},1,1) lds={l}\n' for k, g, b, l in launches)
    return hdr + A.text() + ''.join(descs)

def st_k1(A):
    DBGHOOK[0] = lambda A, k: dbg_stamp(A, 0, {0: 0, 2: 1, 4: 2, 7: 3}[k], 200) if k in (0, 2, 4, 7) else None
    nv = k1.gen_k1(A, 'proj_kernel', 'code_start', 'code_end')
    return dict(launch=[('proj_kernel', 256, 512, k1.K1_LDS)], desc=[kernel_desc('proj_kernel', nv)])

def guard(A, n):
    go = A.label('go')
    A(f's_cmp_lt_u32 s2, {n}\ns_cbranch_scc1 {go}\ns_endpgm\n{go}:')

import os
def weight_prefetch(A, when):
    vo3, vo4, vd = 160, 163, 164
    if when == 'setup':
        A(f'''s_load_dwordx4 s[48:51], s[0:1], {ARG['w3']}
        s_load_dwordx2 s[16:17], s[0:1], {ARG['wo']}
        s_mov_b32 s18, {D*D*2}
        s_mov_b32 s19, 0x20000
        s_lshr_b32 s60, s3, 3
        s_lshl_b32 s60, s60, 2
        s_add_u32 s60, s60, s20
        s_mul_i32 s60, s60, 384
        v_add_u32 v{vo4}, s60, v1
        s_and_b32 s60, s3, 1
        s_lshl_b32 s60, s60, 2
        s_bfe_u32 s61, s3, 0x20001
        s_add_u32 s60, s60, s61
        s_mul_i32 s61, s60, 1152
        s_mul_i32 s62, s60, {576*1152}''')
        A(f'''s_waitcnt lgkmcnt(0)
        s_mov_b32 s52, s50
        s_mov_b32 s53, s51
        s_mov_b32 s50, {D*F*2}
        s_mov_b32 s51, 0x20000
        s_add_u32 s54, s62, {576*1152}
        s_mov_b32 s55, 0x20000
        s_mov_b32 s56, 58255''')
    elif when == 'loop':
        l4, le = A.label('pf4'), A.label('pfe')
        lo = A.label('pfo')
        r = [f's_cmp_ge_u32 s29, 4', f's_cbranch_scc1 {lo}', 's_cmp_ge_u32 s29, 2', f's_cbranch_scc1 {l4}']
        for n in range(3):
            r += [f'v_mul_u32_u24 v{vo3}, s56, v{vo4}', f'v_lshrrev_b32 v{vo3}, 22, v{vo3}', f'v_mul_u32_u24 v{vo3}, {9216-1152}, v{vo3}',
                  f'v_lshl_add_u32 v{vo3}, v{vo4}, 4, v{vo3}', f'buffer_load_dwordx4 v[{vd}:{vd+3}], v{vo3}, s[48:51], s61 offen', f'v_add_u32 v{vo4}, 64, v{vo4}']
        r += [f's_branch {le}', f'{l4}:']
        for n in range(3):
            r += [f'v_subrev_u32 v{vo4}, 64, v{vo4}', f'v_lshlrev_b32 v{vo3}, 4, v{vo4}', f'buffer_load_dwordx4 v[{vd}:{vd+3}], v{vo3}, s[52:55], s62 offen']
        r += [f's_branch {le}', f'{lo}:']
        for n in range(3):
            r += [f'v_lshlrev_b32 v{vo3}, 4, v{vo4}', f'buffer_load_dwordx4 v[{vd}:{vd+3}], v{vo3}, s[16:19], 0 offen', f'v_add_u32 v{vo4}, 64, v{vo4}']
        return r + [f'{le}:']

def st_main(A):
    li = 1
    kernel_begin(A, 'main_kernel'); guard(A, 512)
    lm = A.label('mlprole')
    pa = int(os.environ.get('PA', 2)); pm = int(os.environ.get('PM', 3))
    A(f's_and_b32 s3, s2, 255\ns_cmp_ge_u32 s2, 256\ns_cbranch_scc1 {lm}')
    if 'A' in mlp.ABL: A('s_endpgm')
    DBGHOOK[0] = lambda A, k: dbg_stamp(A, 1, {0: 4, 2: 5, 7: 6}[k], 100) if k in (0, 2, 7) else None
    att.gen_att(A, 3, prio=pa, li=li, prefetch=weight_prefetch)
    A('.p2align 6'); A(f'{lm}:')
    DBGHOOK[0] = lambda A, k: dbg_stamp(A, 1, {2: 7, 4: 8, 7: 10}[k], 356) if k in (2, 4, 7) else None
    stamp(A, 0)
    if pm: A(f's_setprio {pm}')
    mlp.prologue(A, 3)
    mlp.gen_main(A, os.environ.get('PST', 'sc1'), li)
    return dict(launch=[('main_kernel', 512, 256, mlp.MLP_LDS)], desc=[kernel_desc('main_kernel', 256)])

def st_k3(A):
    DBGHOOK[0] = lambda A, k: dbg_stamp(A, 2, {0: 11, 2: 12, 5: 13}[k], 100) if k in (0, 2, 5) else None
    k3.gen_k3(A, 'final_kernel', li=2)
    return dict(launch=[('final_kernel', k3.K3_GRID, 320, k3.K3_LDS)], desc=[kernel_desc('final_kernel', k3.K3_NV)])

def st_nop(A, n=[0]):
    n[0] += 1
    name = f'nop{n[0]}_kernel'
    kernel_begin(A, name); A('s_endpgm')
    return dict(launch=[(name, 256, 64, 0)], desc=[kernel_desc(name, 8)])

def st_touch(A):
    name = 'touch_kernel'
    kernel_begin(A, name); guard(A, 256)
    A(f'''s_load_dwordx16 s[4:19], s[0:1], 0
    s_load_dwordx2 s[20:21], s[0:1], 64
    s_load_dwordx2 s[24:25], s[0:1], 80
    s_lshr_b32 s3, s2, 3
    s_lshl_b32 s3, s3, 6
    v_add_u32 v1, s3, v0
    v_lshlrev_b32 v2, {os.environ.get('TS', 12)}, v1
    v_lshlrev_b32 v3, 15, v1
    s_waitcnt lgkmcnt(0)''')
    sizes = [S*D*2, D*3*D*2, D*D*2, 0, D*D*2, D*D*2, D*F*2, D*F*2, S*D*2]
    for i, n in enumerate(sizes):
        if n: A(f's_mov_b32 s28, s{4+2*i}\ns_mov_b32 s29, s{5+2*i}\ns_mov_b32 s30, {n}\ns_mov_b32 s31, 0x20000\nbuffer_load_dword v{4+i}, v2, s[28:31], 0 offen')
    A(f's_mov_b32 s26, {WS_END}\ns_mov_b32 s27, 0x20000\nbuffer_load_dword v16, v3, s[24:27], 0 offen\ns_waitcnt vmcnt(0)\ns_endpgm')
    return dict(launch=[(name, 256, 64, 0)], desc=[kernel_desc(name, 24)])

if __name__ == '__main__':
    out = sys.argv[1]
    open(out, 'w').write(build([globals()['st_'+n] for n in sys.argv[2:]]))
```

```python
class Asm:
    def __init__(self):
        self.lines = []
        self.uid = 0
    def __call__(self, s=''):
        for ln in s.split('\n'):
            ln = ln.strip()
            if not ln: continue
            self.lines.append(ln if ln.endswith(':') or ln.startswith('.') else '  ' + ln)
    def label(self, base):
        self.uid += 1
        return f'L{base}_{self.uid}'
    def text(self):
        return '\n'.join(self.lines) + '\n'

def v(a, n=1):
    return f'v{a}' if n == 1 else f'v[{a}:{a+n-1}]'
def s(a, n=1):
    return f's{a}' if n == 1 else f's[{a}:{a+n-1}]'

def kernel_begin(A, name):
    A('.text'); A(f'.globl {name}'); A('.p2align 8'); A(f'.type {name},@function'); A(f'{name}:')

def kernel_desc(name, nvgpr, nsgpr=96):
    acc = min(256, (nvgpr + 3)//4*4)
    return f'''.section .rodata,"a"
.p2align 6
.amdhsa_kernel {name}
  .amdhsa_next_free_vgpr {nvgpr}
  .amdhsa_next_free_sgpr {nsgpr}
  .amdhsa_accum_offset {acc}
  .amdhsa_group_segment_fixed_size 0
  .amdhsa_kernarg_size 88
  .amdhsa_user_sgpr_count 2
  .amdhsa_user_sgpr_kernarg_segment_ptr 1
  .amdhsa_system_sgpr_workgroup_id_x 1
  .amdhsa_float_denorm_mode_32 3
.end_amdhsa_kernel
'''

def interleave(main, fill):
    out = []; n = len(main); m = len(fill); k = 0
    for i, x in enumerate(main):
        out.append(x)
        upto = m*(i+1)//n
        out += fill[k:upto]; k = upto
    return out

import struct
def f32(x):
    return '0x%08x' % struct.unpack('<I', struct.pack('<f', x))[0]

import os
STAMPS = os.environ.get('STAMPS') == '1'
DBGHOOK = [None]
def stamp(A, k):
    if DBGHOOK[0]: DBGHOOK[0](A, k)
    if not STAMPS: return
    A(f's_memtime s[{64+4*k}:{65+4*k}]')
    A(f's_memrealtime s[{66+4*k}:{67+4*k}]')
def stamp_flush(A, region, s_wg, srd=12, nst=8):
    if not STAMPS: return
    A('s_waitcnt lgkmcnt(0)')
    A('s_mov_b64 exec, 1')
    A(f'v_mov_b32 v2, s20')
    A(f's_lshl_b32 s63, s{s_wg}, 3')
    A(f'v_add_u32 v2, s63, v2')
    A(f'v_lshlrev_b32 v2, 6, v2')
    A(f'v_add_u32 v2, {region}, v2')
    for k in range(nst):
        A(f'v_mov_b32 v4, s{64+4*k}')
        A(f'v_mov_b32 v5, s{66+4*k}')
        A(f'buffer_store_dwordx2 v[4:5], v2, s[{srd}:{srd+3}], 0 offen offset:{8*k}')
        A('s_nop 1')

DBGT = os.environ.get('DBGT') == '1'
def dbg_stamp(A, li, word, wg):
    if not DBGT: return
    sk = A.label('dbg')
    A(f'''s_cmp_lg_u32 s2, {wg}
    s_cbranch_scc1 {sk}
    s_load_dwordx2 s[88:89], s[0:1], 72
    s_memrealtime s[92:93]
    s_waitcnt lgkmcnt(0)
    s_add_u32 s88, s88, {512*(int(os.environ.get('NL', 3))-1-li)}
    s_addc_u32 s89, s89, 0
    s_mov_b32 s90, 256
    s_mov_b32 s91, 0x20000
    v_mov_b32 v250, s92
    v_mov_b32 v251, {4*word}
    buffer_store_dword v250, v251, s[88:91], 0 offen
    s_waitcnt vmcnt(0)
    {sk}:''')

def hold_begin(A, tag):
    if os.environ.get('HOLD', '').split(':')[0] == tag: A('s_memrealtime s[84:85]')
def hold_end(A, tag, wg):
    h = os.environ.get('HOLD', '').split(':')
    if h[0] != tag: return
    lp, sk = A.label('hold'), A.label('nohold')
    A(f'''s_cmp_lg_u32 s2, {wg}
    s_cbranch_scc1 {sk}
    {lp}:
    s_memrealtime s[86:87]
    s_waitcnt lgkmcnt(0)
    s_sub_u32 s86, s86, s84
    s_cmp_lt_u32 s86, {h[1]}
    s_cbranch_scc1 {lp}
    {sk}:''')
```

```python
import os
from asmlib import *
from layout import *
from k1 import C1, C2
ABL = os.environ.get('ABL', '')

ORDER = os.environ.get('ORDER', 'mid'); SPREAD = os.environ.get('SPREAD', '1') == '1'
TAIL = int(os.environ.get('TAIL', 0))
W2S = os.environ.get('W2S') == '1'
RS = 12288; NR = 5
L_STASH = RS*NR; L_X = L_STASH
MLP_LDS = L_X + 18432
MLP_NV = 256

sX, sM, sWS = 4, 8, 12
s_w, s_r, s_c, s_j, s_rb, s_t, s_t2, s_src, s_m, s_sig, s_cnt, s_jump, s_st, s_pb, s_rbw, s_cur = range(20, 36)
p_w2, p_w3, p_w4 = 40, 42, 44
vln, vDs, vA0, vA1, vc1, vc2, vir = 1, 2, 3, 4, 5, 6, 7
TMP = [8, 9, 10, 11]
Y = 12; ACC = [156, 172]; AF = 188; OWNR = 204; vSt, vT, vx0, vx1 = 252, 253, 254, 255

MAP = {'slice': f's_mov_b32 s{s_j}, s{s_t2}\ns_mov_b32 s{s_rb}, s{s_cnt}',
       'rows': f's_mov_b32 s{s_j}, s{s_sig}\ns_mov_b32 s{s_rb}, s{s_rbw}',
       'half': f's_and_b32 s{s_j}, s{s_t2}, 1\ns_lshl_b32 s{s_j}, s{s_j}, 2\ns_lshr_b32 s{s_rb}, s{s_cnt}, 3\ns_add_u32 s{s_j}, s{s_j}, s{s_rb}\n'
               f's_lshr_b32 s{s_rb}, s{s_t2}, 1\ns_lshl_b32 s{s_rb}, s{s_rb}, 3\ns_and_b32 s{s_t}, s{s_cnt}, 7\ns_add_u32 s{s_rb}, s{s_rb}, s{s_t}'}

THR = int(os.environ.get('THR', 12))
class VM:
    def __init__(self, A): self.A = A; self.n = 0; self.tag = {}; self.done = 0
    def throttle(self, n=None):
        n = THR if n is None else n
        if self.n - self.done > n:
            self.A(f's_waitcnt vmcnt({n})'); self.done = self.n - n
    def emit(self, ln):
        if isinstance(ln, tuple):
            ln, tg = ln
            self.A(ln); self.n += 1; self.tag[tg] = self.n
        else:
            self.A(ln)
            if ln.lstrip().startswith(('buffer_', 'global_')): self.n += 1
    def wait(self, *tags):
        assert ABL or all(t in self.tag for t in tags), tags
        need = max([self.tag.get(t, 0) for t in tags])
        if need > self.done:
            self.A(f's_waitcnt vmcnt({min(63, self.n - need)})'); self.done = need

def matrix_lane_offsets(A, dst, pitch, wrows):
    A(f'''v_lshrrev_b32 {v(TMP[0])}, 3, {v(vln)}
    v_lshlrev_b32 {v(TMP[1])}, 1, {v(TMP[0])}
    v_and_b32 {v(TMP[1])}, 4, {v(TMP[1])}
    v_xor_b32 {v(TMP[1])}, {v(TMP[1])}, {v(vln)}
    v_and_b32 {v(TMP[1])}, 7, {v(TMP[1])}
    {f'v_add_u32 {v(TMP[0])}, {s(wrows)}, {v(TMP[0])}' if wrows else ''}
    v_mul_u32_u24 {v(TMP[0])}, {pitch}, {v(TMP[0])}
    v_lshl_add_u32 {v(dst)}, {v(TMP[1])}, 4, {v(TMP[0])}''')
def abase(dst, hrows, t0, t1):
    return f'''v_lshrrev_b32 {v(t0)}, 5, {v(vln)}
    v_bfe_u32 {v(t1)}, {v(vln)}, 2, 2
    v_mad_u32_u24 {v(t0)}, {v(t0)}, {hrows}, {v(t1)}
    v_lshlrev_b32 {v(t0)}, 7, {v(t0)}
    v_lshrrev_b32 {v(t1)}, 1, {v(t1)}
    v_xor_b32 {v(t1)}, {s(s_c)}, {v(t1)}
    v_lshl_add_u32 {v(t0)}, {v(t1)}, 6, {v(t0)}
    v_bfe_u32 {v(t1)}, {v(vln)}, 4, 1
    v_lshl_add_u32 {v(t0)}, {v(t1)}, 5, {v(t0)}
    v_and_b32 {v(t1)}, 3, {v(vln)}
    v_lshl_add_u32 {v(dst)}, {v(t1)}, 3, {v(t0)}'''.split('\n')
def lines(fn):
    B = Asm(); fn(B); return [x.strip() for x in B.lines]
def gelu_pack(acc, dst):
    r = []
    for b in range(0, 16, 4):
        rs = [acc+b+i for i in range(4)]
        r += [f'v_mul_f32 {v(t)}, {v(a)}, {v(a)}' for a, t in zip(rs, TMP)]
        r += [f'v_fma_f32 {v(t)}, {v(t)}, {v(vc2)}, {v(vc1)}' for a, t in zip(rs, TMP)]
        r += [f'v_mul_f32 {v(t)}, {v(t)}, {v(a)}' for a, t in zip(rs, TMP)]
        r += [f'v_exp_f32 {v(t)}, {v(t)}' for a, t in zip(rs, TMP)]
        r += [f'v_fma_f32 {v(t)}, {v(t)}, {v(vir)}, {v(vir)}' for a, t in zip(rs, TMP)]
        r += [f'v_rcp_f32 {v(t)}, {v(t)}' for a, t in zip(rs, TMP)]
        r += [f'v_mul_f32 {v(a)}, {v(a)}, {v(t)}' for a, t in zip(rs, TMP)]
        r += [f'v_cvt_pk_bf16_f32 {v(dst+b//2+i)}, {v(acc+b+2*i)}, {v(acc+b+2*i+1)}' for i in range(2)]
    return r
def pack_store_T(acc, soff, flag):
    r = [f'v_cvt_pk_bf16_f32 {v(acc+i)}, {v(acc+2*i)}, {v(acc+2*i+1)}' for i in range(8)]
    for a in range(2):
        b = acc+4*a
        r += [f'v_permlane32_swap_b32 {v(b)}, {v(b+2)}', f'v_permlane32_swap_b32 {v(b+1)}, {v(b+3)}',
              f'buffer_store_dwordx4 {v(b,4)}, {v(vSt)}, {s(sWS,4)}, {s(soff)} offen {flag}', f's_add_u32 {s(soff)}, {s(soff)}, {2*GP}']
    return r
def token_regs(A, srb):
    A(f'''s_lshl_b32 {s(s_t)}, {s(srb)}, 1
    s_add_u32 {s(s_t)}, {s(s_t)}, {s(s_r)}
    s_lshl_b32 {s(s_t)}, {s(s_t)}, 5
    v_and_b32 {v(vT)}, 31, {v(vln)}
    v_add_u32 {v(vT)}, {s(s_t)}, {v(vT)}
    v_lshrrev_b32 {v(TMP[0])}, 5, {v(vln)}
    v_lshlrev_b32 {v(vSt)}, 15, {v(TMP[0])}
    v_lshl_add_u32 {v(vSt)}, {v(vT)}, 4, {v(vSt)}''')

def prologue(A, s_id):
    A(f'''s_load_dwordx2 s[4:5], s[0:1], {ARG['x']}
    s_load_dwordx4 {s(p_w2,4)}, s[0:1], {ARG['w2']}
    s_load_dwordx2 {s(p_w4,2)}, s[0:1], {ARG['w4']}
    s_load_dwordx2 s[12:13], s[0:1], {ARG['ws']}
    v_lshrrev_b32 {v(TMP[0])}, 6, v0
    v_and_b32 {v(vln)}, 63, v0
    v_readfirstlane_b32 {s(s_w)}, {v(TMP[0])}
    s_and_b32 {s(s_t2)}, {s(s_id)}, 7
    s_lshr_b32 {s(s_cnt)}, {s(s_id)}, 3
    s_and_b32 {s(s_t)}, {s(s_cnt)}, 3
    s_lshl_b32 {s(s_rbw)}, {s(s_t2)}, 2
    s_add_u32 {s(s_rbw)}, {s(s_rbw)}, {s(s_t)}
    s_lshr_b32 {s(s_sig)}, {s(s_cnt)}, 2
    {MAP[os.environ.get('MAP', 'half')]}
    s_mov_b32 s6, {S*D*2}
    s_mov_b32 s7, 0x20000
    s_mov_b32 s11, 0x20000
    s_mov_b32 s14, {WS_BYTES}
    s_mov_b32 s15, 0x20000
    s_and_b32 {s(s_r)}, {s(s_w)}, 1
    s_lshr_b32 {s(s_c)}, {s(s_w)}, 1
    s_lshl_b32 {s(s_m)}, {s(s_w)}, 10''')

def flag_regs(one, off):
    return [f'v_mov_b32 {v(one)}, 1', f'v_min_u32 {v(off)}, 1, {v(vln)}', f'v_lshlrev_b32 {v(off)}, 30, {v(off)}']
def flag_store(A, soff, t0, t1):
    for ln in flag_regs(t0, t1): A(ln)
    A(f'buffer_store_dword {v(t0)}, {v(t1)}, s[12:15], {s(soff)} offen sc1')

def poll(A, soff, t0, t1, scnt, lane=vln, sleep=1):
    lp, got = A.label('poll'), A.label('got')
    A(f'''v_lshlrev_b32 {v(t0)}, 2, {v(lane)}
    s_mov_b32 {s(scnt)}, 0
    s_mov_b32 exec_hi, 0
    {lp}:
    buffer_load_dword {v(t1)}, {v(t0)}, s[12:15], {s(soff)} offen sc1
    s_add_u32 {s(scnt)}, {s(scnt)}, 1
    s_waitcnt vmcnt(0)
    v_cmp_ne_u32 vcc, 1, {v(t1)}
    s_cbranch_vccz {got}
    s_cmp_lt_u32 {s(scnt)}, 0x40000
    s_sleep {sleep}
    s_cbranch_scc1 {lp}
    {got}:
    s_mov_b64 exec, -1''')

def gen_w2(A, vm, early, ring_free, after_flag):
    MB = OWNR; XR = OWNR+16; M0, R0, SQa = OWNR+26, OWNR+27, OWNR+28; vB = OWNR+29; SH = [OWNR+30+i for i in range(4)]
    token_regs(A, s_rbw)
    matrix_lane_offsets(A, vDs, 1152, None)
    s_q = s_cur
    A(f'''v_lshlrev_b32 {v(vx1)}, 4, {v(vln)}
    s_and_b32 {s(s_q)}, {s(s_sig)}, 3
    s_add_u32 {s(s_t)}, {s(s_q)}, {s(s_w)}
    s_and_b32 {s(s_t)}, {s(s_t)}, 3
    s_mul_i32 {s(s_t)}, {s(s_t)}, 4608
    s_mul_i32 {s(s_cnt)}, {s(s_sig)}, 18432
    s_add_u32 {s(s_cnt)}, {s(s_cnt)}, {s(s_t)}
    s_add_u32 {s(s_cnt)}, {s(s_cnt)}, {XIMG}
    s_mul_i32 {s(s_st)}, {s(s_w)}, 4608
    s_mul_i32 {s(s_m)}, {s(s_w)}, 3072
    s_lshl_b32 {s(s_src)}, {s(s_sig)}, 7
    s_mul_i32 {s(s_t)}, {s(s_q)}, {144*1152}
    s_add_u32 {s(s_src)}, {s(s_src)}, {s(s_t)}
    s_mul_i32 {s(s_t)}, {s(s_w)}, {24*1152}
    s_add_u32 {s(s_src)}, {s(s_src)}, {s(s_t)}
    s_mov_b32 s10, {D*D*2}''')
    for g in range(4):
        A(f'''s_add_u32 {s(s_t)}, {s(s_q)}, {g}
        s_bfe_u32 {s(s_t2)}, {s(s_t)}, 0x10001
        s_add_u32 {s(s_t2)}, {s(s_t2)}, 1
        s_and_b32 {s(s_t)}, {s(s_t)}, 1
        s_lshl_b32 {s(s_t)}, {s(s_t)}, 1
        s_sub_u32 {s(s_t)}, {s(s_t)}, 1
        s_mul_i32 {s(s_t)}, {s(s_t)}, {s(s_t2)}
        v_add_u32 {v(TMP[0])}, {s(s_t)}, {v(vT)}
        s_lshl_b32 {s(s_t)}, {s(s_t)}, 4
        v_cmp_gt_u32 vcc, {S}, {v(TMP[0])}
        v_add_u32 {v(TMP[1])}, {s(s_t)}, {v(vSt)}
        v_mov_b32 {v(TMP[2])}, 0x7fff0000
        v_cndmask_b32 {v(SH[g])}, {v(TMP[2])}, {v(TMP[1])}, vcc''')
    X1, X4 = SH[3]+1, SH[3]+2
    A(f"""s_cmp_eq_u32 {s(s_c)}, 1
    s_cselect_b64 vcc, -1, 0
    s_mul_i32 {s(s_jump)}, {s(s_q)}, {18*GP}
    s_mul_i32 {s(s_t)}, {s(s_c)}, {6*GP}
    v_cndmask_b32 {v(X1)}, {v(SH[0])}, {v(SH[1])}, vcc
    v_cndmask_b32 {v(X4)}, {v(SH[2])}, {v(SH[3])}, vcc
    s_add_u32 {s(s_jump)}, {s(s_jump)}, {s(s_t)}
    s_add_u32 {s(s_jump)}, {s(s_jump)}, {TH}""")
    SHI = [SH[0], X1, SH[1], SH[2], X4, SH[3]]
    def slot(i):
        r = [f's_cmp_ge_u32 {s(s_src)}, {576*1152}\ns_cselect_b32 {s(s_t2)}, {576*1152}, 0\ns_sub_u32 {s(s_src)}, {s(s_src)}, {s(s_t2)}\ns_add_u32 m0, {s(s_m)}, {RS*(i % NR)}\ns_nop 0']
        for m in range(3):
            r += [(f'buffer_load_dwordx4 {v(vDs)}, {s(sM,4)}, {s(s_src)} offen offset:{1024*m} lds', ('dma', i)),
                  f's_add_u32 {s(s_src)}, {s(s_src)}, {8*1152-1024 if m < 2 else 80*1152+2048}']
        return [r[:3], r[3:5], r[5:]]
    def hl(n):
        r = [f's_cmp_ge_u32 {s(s_jump)}, {TH+TSZ}\ns_cselect_b32 {s(s_t2)}, {TSZ}, 0\ns_sub_u32 {s(s_jump)}, {s(s_jump)}, {s(s_t2)}'] if n % 3 == 0 else []
        return r + [(f'buffer_load_dwordx4 {v(Y+4*n,4)}, {v(SHI[n//3])}, {s(sWS,4)}, {s(s_jump)} offen', ('h', n)), f's_add_u32 {s(s_jump)}, {s(s_jump)}, {2*GP if n % 3 < 2 else 8*GP}']
    early()
    A(f"""s_add_u32 m0, {s(s_st)}, {L_X}
    s_waitcnt lgkmcnt(0)
    s_mov_b32 s8, {s(p_w2)}
    s_mov_b32 s9, {s(p_w2+1)}""")
    for ln in hl(0): vm.emit(ln)
    for n in range(4):
        vm.emit(f'buffer_load_dwordx4 {v(vx1)}, {s(sWS,4)}, {s(s_cnt)} offen offset:{1024*n} lds')
    A(f's_add_u32 m0, {s(s_st)}, {L_X+4096}\ns_add_u32 {s(s_cnt)}, {s(s_cnt)}, 4096\ns_mov_b32 exec_hi, 0')
    vm.emit(f'buffer_load_dwordx4 {v(vx1)}, {s(sWS,4)}, {s(s_cnt)} offen lds')
    A('s_mov_b64 exec, -1')
    sched = slot(0) + slot(1)
    for i in range(6):
        if i == 3: first5 = len(sched)
        for m in range(3):
            if 3*i+m+1 < 18: sched.append(hl(3*i+m+1))
            if i < 4: sched.append(slot(i+2)[m])
    WL = int(os.environ.get('WL', 9))
    for n, grp in enumerate(sched[:WL]):
        if n >= 3: vm.throttle()
        for ln in grp: vm.emit(ln)
    A(f"""v_and_b32 {v(TMP[0])}, 19, {v(vln)}
    v_min_u32 {v(TMP[0])}, 3, {v(TMP[0])}
    v_lshlrev_b32 {v(TMP[0])}, 3, {v(TMP[0])}
    v_lshrrev_b32 {v(TMP[1])}, 5, {v(vln)}
    v_bfe_u32 {v(TMP[2])}, {v(vln)}, 2, 2
    v_lshl_add_u32 {v(TMP[2])}, {v(TMP[1])}, 3, {v(TMP[2])}
    v_lshl_add_u32 {v(TMP[0])}, {v(TMP[2])}, 5, {v(TMP[0])}
    s_mul_i32 {s(s_t)}, {s(s_c)}, 1536
    s_add_u32 {s(s_t)}, {s(s_t)}, {L_X}
    v_add_u32 {v(vB)}, {s(s_t)}, {v(TMP[0])}
    v_lshlrev_b32 {v(vx0)}, 4, {v(vT)}
    v_lshl_add_u32 {v(vx0)}, {v(TMP[1])}, 3, {v(vx0)}
    s_lshl_b32 {s(s_cnt)}, {s(s_sig)}, 1
    s_add_u32 {s(s_cnt)}, {s(s_cnt)}, {s(s_c)}""")
    for ln in abase(vA0, 8, TMP[0], TMP[1]): A(ln)
    A(f"""s_mul_i32 {s(s_t)}, {s(s_c)}, 6144
    v_add_u32 {v(vA0)}, {s(s_t)}, {v(vA0)}
    v_xor_b32 {v(vA1)}, 64, {v(vA0)}""")
    SND = Y+72; AB = [Y+88+12*i for i in range(3)]
    def rd(n):
        b = AB[n % 3]; o = ((n//3) % NR)*RS + (n % 3)*2048; ox = (n//3)*3072 + (n % 3)*512
        return [f'ds_read_b64_tr_b16 {v(b,2)}, {v(vA0)} offset:{o}', f'ds_read_b64_tr_b16 {v(b+2,2)}, {v(vA0)} offset:{o+512}',
                f'ds_read_b64_tr_b16 {v(b+4,2)}, {v(vA1)} offset:{o}', f'ds_read_b64_tr_b16 {v(b+6,2)}, {v(vA1)} offset:{o+512}',
                f'ds_read_b64_tr_b16 {v(b+8,2)}, {v(vB)} offset:{ox}', f'ds_read_b64_tr_b16 {v(b+10,2)}, {v(vB)} offset:{ox+128}']
    if not TAIL: stamp(A, 1)
    vm.wait(('dma', 0)); A('s_barrier')
    if TAIL == 3: stamp(A, 1)
    for n in range(2):
        for ln in rd(n): A(ln)
    tail = [[f'v_lshlrev_b32 {v(TMP[0])}, 2, {v(vT)}', f's_mov_b32 {s(s_t)}, {ST}', f'buffer_load_dword {v(M0)}, {v(TMP[0])}, {s(sWS,4)}, {s(s_t)} offen'],
            [f's_mov_b32 {s(s_t)}, {ST+8192}', f'buffer_load_dword {v(R0)}, {v(TMP[0])}, {s(sWS,4)}, {s(s_t)} offen'],
            [f's_lshl_b32 {s(s_t)}, {s(s_cnt)}, 17\ns_add_u32 {s(s_t)}, {s(s_t)}, {TX}', f'buffer_load_dwordx4 {v(XR,4)}, {v(vSt)}, {s(sWS,4)}, {s(s_t)} offen'],
            [f's_add_u32 {s(s_t)}, {s(s_t)}, {2*GP}', f'buffer_load_dwordx4 {v(XR+4,4)}, {v(vSt)}, {s(sWS,4)}, {s(s_t)} offen'],
            [f's_lshl_b32 {s(s_t)}, {s(s_sig)}, 15\ns_add_u32 {s(s_t)}, {s(s_t)}, {TX+64*GP}', (f'buffer_load_dwordx2 {v(XR+8,2)}, {v(vx0)}, {s(sWS,4)}, {s(s_t)} offen', 'x')]]
    rest = sched[WL:] + tail; ri = 0
    for n in range(18):
        vm.wait(('h', n))
        A(f's_waitcnt lgkmcnt({6*min(1, 17-n)})')
        upto = min(len(rest), 2*(n+1))
        if n < 4: upto = min(upto, first5 - WL)
        grps = rest[ri:upto]; ri = max(ri, upto)
        for e, acc in enumerate((ACC[0], SND, ACC[1])):
            A(f'v_mfma_f32_32x32x16_bf16 {v(acc,16)}, {v(AB[n % 3]+4*e,4)}, {v(Y+4*n,4)}, ' + ('0' if n == 0 else v(acc,16)))
            if e == 0:
                if n % 3 == 1 and n < 16:
                    vm.wait(('dma', n//3+1)); A('s_barrier')
                if n+2 < 18:
                    for ln in rd(n+2): A(ln)
            elif e-1 < len(grps):
                vm.throttle(int(os.environ.get('THR2', 8)))
                for ln in grps[e-1]: vm.emit(ln)
    assert ri == len(rest)
    if TAIL == 3: stamp(A, 2)
    A(f"""s_mul_i32 {s(s_t)}, {s(s_w)}, 6144
    v_add_u32 {v(TMP[0])}, {s(s_t)}, {v(vx1)}
    s_xor_b32 {s(s_t)}, {s(s_w)}, 2
    s_mul_i32 {s(s_t)}, {s(s_t)}, 6144
    v_add_u32 {v(TMP[1])}, {s(s_t)}, {v(vx1)}
    s_barrier
    s_nop 4""")
    for q in range(4): A(f'ds_write_b128 {v(TMP[0])}, {v(SND+4*q,4)} offset:{1024*q}')
    for q in range(2): A(f'ds_write_b128 {v(TMP[0])}, {v(ACC[1]+4*q,4)} offset:{4096+1024*q}')
    A('s_waitcnt lgkmcnt(0)\ns_barrier')
    for q in range(2): A(f'ds_read_b128 {v(AB[0]+4*q,4)}, {v(TMP[1])} offset:{4096+1024*q}')
    for q in range(4): A(f'ds_read_b128 {v(SND+4*q,4)}, {v(TMP[1])} offset:{1024*q}')
    vm.wait('x')
    A('s_waitcnt lgkmcnt(4)')
    for i in range(6): A(f'v_add_f32 {v(ACC[1]+i)}, {v(ACC[1]+i)}, {v(AB[0]+i)}')
    A('s_waitcnt lgkmcnt(0)')
    for i in range(16): A(f'v_add_f32 {v(ACC[0]+i)}, {v(ACC[0]+i)}, {v(SND+i)}')
    if TAIL == 3: stamp(A, 3)
    a0, a1 = ACC
    A(f'''s_lshl_b32 {s(s_st)}, {s(s_cnt)}, 17
    s_add_u32 {s(s_st)}, {s(s_st)}, {TY}
    s_lshr_b32 {s(s_t)}, {s(s_cnt)}, 2
    s_lshl_b32 {s(s_t)}, {s(s_t)}, 15
    s_and_b32 {s(s_cnt)}, {s(s_cnt)}, 3
    s_lshl_b32 {s(s_cnt)}, {s(s_cnt)}, 2
    s_add_u32 {s(s_cnt)}, {s(s_cnt)}, {s(s_t)}
    s_add_u32 {s(s_cnt)}, {s(s_cnt)}, {SQ}
    s_lshl_b32 {s(s_t)}, {s(s_sig)}, 15
    s_add_u32 {s(s_t)}, {s(s_t)}, {TY + 64*GP}
    s_cmp_eq_u32 {s(s_sig)}, 0
    s_mov_b32 {s(s_t2)}, 0x40000000
    s_cselect_b32 {s(s_t2)}, {MEAN}, {s(s_t2)}
    v_mul_f32 {v(TMP[3])}, {v(M0)}, {v(R0)}
    v_mov_b32 {v(SQa)}, 0
    v_permlane32_swap_b32 {v(XR)}, {v(XR+2)}
    v_permlane32_swap_b32 {v(XR+1)}, {v(XR+3)}
    v_permlane32_swap_b32 {v(XR+4)}, {v(XR+6)}
    v_permlane32_swap_b32 {v(XR+5)}, {v(XR+7)}
    v_add_f32 {v(TMP[2])}, {v(a1+4)}, {v(a1+5)}
    v_add_f32 {v(TMP[1])}, {v(a1+4)}, {v(a1+5)}
    s_barrier''')
    ring_free()
    A(f'''s_cmp_eq_u32 {s(s_c)}, 1
    v_permlane32_swap_b32 {v(TMP[2])}, {v(TMP[1])}''')
    def elem(a, xr, odd):
        A(f'v_and_b32 {v(TMP[0])}, 0xffff0000, {v(xr)}' if odd else f'v_lshlrev_b32 {v(TMP[0])}, 16, {v(xr)}')
        A(f'''v_fma_f32 {v(TMP[1])}, {v(TMP[0])}, {v(R0)}, -{v(TMP[3])}
        v_sub_f32 {v(a)}, {v(a)}, {v(TMP[2])}
        v_add_f32 {v(a)}, {v(a)}, {v(TMP[1])}
        v_fmac_f32 {v(SQa)}, {v(a)}, {v(a)}''')
    nox = A.label('nox')
    A(f's_cbranch_scc1 {nox}')
    for i in range(4): elem(a1+i, XR+8+i//2, i & 1)
    A(f'''v_cvt_pk_bf16_f32 {v(a1)}, {v(a1)}, {v(a1+1)}
    v_cvt_pk_bf16_f32 {v(a1+1)}, {v(a1+2)}, {v(a1+3)}
    v_lshlrev_b32 {v(TMP[1])}, 2, {v(vT)}
    buffer_store_dwordx2 {v(a1,2)}, {v(vx0)}, {s(sWS,4)}, {s(s_t)} offen sc1
    buffer_store_dword {v(TMP[2])}, {v(TMP[1])}, {s(sWS,4)}, {s(s_t2)} offen sc1
    {nox}:''')
    for i in range(16): elem(a0+i, XR+i//2, i & 1)
    A(f'v_mov_b32 {v(TMP[0])}, {v(SQa)}')
    for ln in pack_store_T(a0, s_st, 'sc1'): A(ln)
    A(f'''v_permlane32_swap_b32 {v(TMP[0])}, {v(SQa)}
    v_lshlrev_b32 {v(TMP[1])}, 4, {v(vT)}
    v_add_f32 {v(TMP[0])}, {v(TMP[0])}, {v(SQa)}
    buffer_store_dword {v(TMP[0])}, {v(TMP[1])}, {s(sWS,4)}, {s(s_cnt)} offen sc1
    s_lshl_b32 {s(s_t)}, {s(s_rbw)}, 3
    s_add_u32 {s(s_t)}, {s(s_t)}, {s(s_sig)}
    s_lshl_b32 {s(s_t)}, {s(s_t)}, 2
    s_add_u32 {s(s_t)}, {s(s_t)}, {s(s_w)}
    s_lshl_b32 {s(s_t)}, {s(s_t)}, 2
    s_add_u32 {s(s_t)}, {s(s_t)}, {YF}''')
    if TAIL == 3: stamp(A, 4)
    A('s_waitcnt vmcnt(0)'); vm.done = vm.n
    flag_store(A, s_t, TMP[0], TMP[1])
    if TAIL == 3: stamp(A, 5)
    after_flag()

def gen_main(A, stflag, li):
    vm = VM(A)
    P3, P4 = 9216, 1152
    NSL = 19; NG = 6*NSL; NK = 36*NSL
    s_z, s_zs, s_of, s_pf, s_pa, s_oo = 36, 37, 38, 39, 46, 47
    p_wo, p_out = 48, 50
    vD4 = Y+3; vSy = vA1; vX0 = 0; vX1 = Y; vD5 = vDs
    PD = int(os.environ.get('PD', 4)); AFB = [AF, AF+4, AF+8, AF+12, vSt][:PD+1]
    def slab_of(t, dst):
        if t == 0: return [f's_mov_b32 {s(dst)}, 8']
        return [f's_add_u32 {s(dst)}, {s(s_j)}, {t % 8}', f's_and_b32 {s(dst)}, {s(dst)}, 7']
    def piece(g, m):
        i = g % 6; n = 3*i + m
        r = [f's_add_u32 m0, {s(s_m)}, {(g % NR)*RS}'] if m == 0 else []
        comp = 2048 if m == 0 else -1024
        if g < 54:
            r.append(f's_add_u32 {s(s_src)}, {s(s_src)}, ' + (f'{8*P3-1024}' if m else s(s_inc+i)) if (g, m) != (0, 0) else 's_nop 0')
            return r + [(f'buffer_load_dwordx4 {v(vDs)}, {s(sM,4)}, {s(s_src)} offen offset:{1024*m} lds', ('slot', g))]
        if g < 108:
            r.append(f's_add_u32 {s(s_src)}, {s(s_src)}, {((16 if n % 2 else 48)*P4 + comp) & 0xffffffff}' if n else f's_mov_b32 {s(s_src)}, {s(s_jump)}')
            return r + [(f'buffer_load_dwordx4 {v(vD4)}, {s(sX,4)}, {s(s_src)} offen offset:{1024*m} lds', ('slot', g))]
        if n == 0: r.append(f's_mov_b32 {s(s_src)}, {s(s_jump)}')
        elif n < 14: r.append(f's_add_u32 {s(s_src)}, {s(s_src)}, {(18*P4 + comp) & 0xffffffff}')
        elif n == 14: r.append(f's_mov_b32 {s(s_src)}, {s(s_z)}')
        else: r.append(f's_add_u32 {s(s_src)}, {s(s_src)}, {s(s_zs)}' + (f'\ns_add_u32 {s(s_src)}, {s(s_src)}, 3072' if m == 0 else ''))
        return r + [(f'buffer_load_dwordx4 {v(vD4 if n < 14 else vD5)}, {s(sM,4)}, {s(s_src)} offen offset:{1024*m} lds', ('slot', g))]
    s_inc, s_i0 = 52, 58; vD3 = OWNR+40
    def early():
        A(f's_load_dwordx2 {s(p_wo,2)}, s[0:1], {ARG["wo"]}\ns_load_dwordx2 {s(p_out,2)}, s[0:1], {ARG["out"]}')
        A(f's_mul_i32 {s(s_t)}, {s(s_w)}, 24')
        matrix_lane_offsets(A, vD3, P3, s_t)
        A(f's_and_b32 {s(s_i0)}, {s(s_j)}, {os.environ.get("ROT", 3)}\ns_mul_i32 {s(s_i0)}, {s(s_i0)}, 3\ns_lshr_b32 {s(s_i0)}, {s(s_i0)}, 1')
        for p in range(6):
            A(f's_cmp_eq_u32 {s(s_i0)}, {(6-p) % 6}\ns_cselect_b32 {s(s_t)}, {576*P3}, 0\ns_sub_u32 {s(s_inc+p)}, {80*P3+2048 + (128 if p == 0 else 0)}, {s(s_t)}')
    def ring_free():
        A(f"""s_mov_b32 s8, {s(p_w3)}
        s_mov_b32 s9, {s(p_w3+1)}
        s_mov_b32 s10, {D*F*2}
        v_mov_b32 {v(vDs)}, {v(vD3)}
        s_mul_i32 {s(s_src)}, {s(s_j)}, 1152
        s_mul_i32 {s(s_jump)}, {s(s_i0)}, {96*P3}
        s_add_u32 {s(s_src)}, {s(s_src)}, {s(s_jump)}""")
        for g in range(2):
            for m in range(3):
                for ln in piece(g, m): vm.emit(ln)
    def after_flag():
        for g in range(2, NR-1):
            for m in range(3):
                for ln in piece(g, m): vm.emit(ln)
    gen_w2(A, vm, early, ring_free, after_flag)
    token_regs(A, s_rb)
    for ln in abase(vA0, 8, TMP[0], TMP[1]): A(ln)
    if not TAIL: stamp(A, 2)
    if TAIL == 3: stamp(A, 6)
    A(f's_lshl_b32 {s(s_t)}, {s(s_rb)}, 7\ns_add_u32 {s(s_of)}, {s(s_t)}, {OF}\ns_add_u32 {s(s_t)}, {s(s_t)}, {YF}')
    poll(A, s_t, TMP[0], TMP[1], s_t2)
    if not TAIL: stamp(A, 3)
    if TAIL == 3: stamp(A, 7)
    A(f's_mul_i32 {s(s_cur)}, {s(s_i0)}, {12*GP}\ns_add_u32 {s(s_cur)}, {s(s_cur)}, {TY}\nv_mov_b32 {v(vSy)}, {v(vSt)}')
    def yload(k): return ([f's_cmp_eq_u32 {s(s_cur)}, {TY+TSZ}\ns_cselect_b32 {s(s_cur)}, {TY}, {s(s_cur)}'] if k % 6 == 0 else []) + [(f'buffer_load_dwordx4 {v(Y+4*k,4)}, {v(vSy)}, {s(sWS,4)}, {s(s_cur)} offen sc1', ('y', k)), f's_add_u32 {s(s_cur)}, {s(s_cur)}, {2*GP}']
    YA = int(os.environ.get('YA', 6))
    for k in range(YA):
        for ln in yload(k): vm.emit(ln)
    A(f"""v_lshrrev_b32 {v(TMP[0])}, 5, {v(vln)}
    v_lshlrev_b32 {v(TMP[0])}, 16, {v(TMP[0])}
    v_lshl_add_u32 {v(vc1)}, {v(vT)}, 4, {v(TMP[0])}
    s_mov_b32 {s(s_sig)}, {SQ}
    s_mov_b32 {s(s_rbw)}, {SQ+GP}
    s_lshl_b32 {s(s_t)}, {s(s_w)}, 12
    s_add_u32 {s(s_t)}, {s(s_t)}, {L_STASH}
    v_lshl_add_u32 {v(vX0)}, {v(vln)}, 4, {s(s_t)}
    s_mov_b32 s4, {s(p_w4)}
    s_mov_b32 s5, {s(p_w4+1)}
    s_mov_b32 s6, {D*F*2}
    s_lshl_b32 {s(s_t)}, {s(s_c)}, 17
    s_add_u32 {s(s_pa)}, {s(s_t)}, {PART}
    s_mul_i32 {s(s_pf)}, {s(s_rb)}, {9*128}
    s_add_u32 {s(s_pf)}, {s(s_pf)}, {PF}
    s_lshl_b32 {s(s_t)}, {s(s_j)}, 4
    s_add_u32 {s(s_pb)}, {s(s_pf)}, {s(s_t)}
    s_lshl_b32 {s(s_t)}, {s(s_w)}, 2
    s_add_u32 {s(s_pb)}, {s(s_pb)}, {s(s_t)}
    s_waitcnt lgkmcnt(0)""")
    sqld = [(f'buffer_load_dwordx4 {v(OWNR+4*i,4)}, {v(vc1)}, {s(sWS,4)}, {s((s_sig, s_rbw)[i])} offen sc1', 'sq') for i in range(2)]
    rstd = [f'v_add_f32 {v(OWNR)}, {v(OWNR)}, {v(OWNR+i)}' for i in range(1, 8)] + f"""v_mov_b32 {v(OWNR+1)}, {v(OWNR)}
    v_mov_b32 {v(TMP[0])}, {f32(1e-5)}
    s_nop 0
    v_permlane32_swap_b32 {v(OWNR)}, {v(OWNR+1)}
    v_add_f32 {v(OWNR)}, {v(OWNR)}, {v(OWNR+1)}
    v_fmac_f32 {v(TMP[0])}, {f32(1.0/D)}, {v(OWNR)}
    v_rsq_f32 {v(TMP[1])}, {v(TMP[0])}
    v_sqrt_f32 {v(vir)}, {v(TMP[0])}
    s_nop 0
    v_mul_f32 {v(vc1)}, {f32(C1)}, {v(TMP[1])}
    v_mul_f32 {v(vc2)}, {v(TMP[1])}, {v(TMP[1])}
    v_mul_f32 {v(vc2)}, {v(vc2)}, {v(TMP[1])}
    v_mul_f32 {v(vc2)}, {f32(C2)}, {v(vc2)}""".split('\n')
    own = {0: Y+8, 1: Y+16, 8: Y+88}; own.update({t: OWNR+8*(t-2) for t in range(2, 8)})
    par = {t: Y+24+8*t for t in range(8)}; par[8] = Y+96
    vK, vP, vOne, vOff, vS2 = Y+1, Y+2, Y+4, Y+5, vA1
    T0, T1 = Y+6, Y+7; vZ = vP
    XF = [Y+104, Y+108, Y+112]; E0, E1, E8 = Y+116, Y+120, Y+124; RA = Y+128
    vWx, vFl, vF1, vPx, vYx, vMe, vOut, vFv = vA0, vc1, vc2, vir, TMP[0], TMP[1], TMP[2], TMP[3]
    GA = 12; GF = int(os.environ.get('GF', 16)); OA = int(os.environ.get('OA', 8))
    def oreg(n): return own[n//2] + 4*(n & 1)
    def breg(k):
        n = 3*(k//6) + k % 3
        return (par if k % 6 >= 3 else own)[n//2] + 4*(n & 1)
    def rdA(K):
        g = K//6; b = AFB[K % (PD+1)]; pos = (g % NR)*RS
        if K < 324:
            o = pos + (K % 6)*2048
            return [f'ds_read_b64_tr_b16 {v(b,2)}, {v(vA0)} offset:{o}', f'ds_read_b64_tr_b16 {v(b+2,2)}, {v(vA0)} offset:{o+512}']
        o = pos + (K % 3)*1024; base = vP if K % 6 >= 3 else vK
        if K >= 648: o = pos + ((K % 6)//2)*1024; base = vZ if K & 1 else vK
        return [f'ds_read_b64_tr_b16 {v(b,2)}, {v(base)} offset:{o}', f'ds_read_b64_tr_b16 {v(b+2,2)}, {v(base)} offset:{o+3072}']
    def rdX(n):
        b = XF[n % 3]
        return [f'ds_read_b64_tr_b16 {v(b,2)}, {v(vWx)} offset:{256*n}', f'ds_read_b64_tr_b16 {v(b+2,2)}, {v(vWx)} offset:{256*n+64}']
    vm.wait(('slot', 0)); A('s_barrier')
    for K in range(PD):
        for ln in rdA(K): A(ln)
    if not TAIL: stamp(A, 4)
    if TAIL == 2: stamp(A, 1)
    A(f"s_setprio {os.environ.get('PM1', 3)}")
    def set_flag(t):
        return slab_of(t, s_t) + [f's_lshl_b32 {s(s_t)}, {s(s_t)}, 7', f's_add_u32 {s(s_t)}, {s(s_t)}, {s(s_pb)}',
                                  f'buffer_store_dword {v(vOne)}, {v(vOff)}, {s(sWS,4)}, {s(s_t)} offen sc1']
    def xw(ts): return [f'ds_write_b128 {v(vX0)}, {v(own[t]+4*hf,4)} offset:{2048*i+1024*hf}' for i, t in enumerate(ts) for hf in range(2)]
    def xr(ts, dst, base): return [f'ds_read_b128 {v(dst[t]+4*hf,4)}, {v(base)} offset:{2048*i+1024*hf}' for i, t in enumerate(ts) for hf in range(2)]
    def epilogue(tp):
        e = [x.replace(f', {v(vSt)},', f', {v(vS2)},') for x in pack_store_T(ACC[(tp+1) & 1], s_st, stflag)]
        e[-2] = (e[-2], ('st', tp))
        return slab_of(tp, s_st) + [f's_lshl_b32 {s(s_st)}, {s(s_st)}, 18', f's_add_u32 {s(s_st)}, {s(s_st)}, {s(s_pa)}',
                                    f's_mul_i32 {s(s_t2)}, {s(s_j)}, {TSZ}', f's_add_u32 {s(s_st)}, {s(s_st)}, {s(s_t2)}'] + e[:-1]
    def flag_check(reg, soff_lines, soff, addr):
        ok, lp = A.label('fok'), A.label('fwait')
        return '\n'.join([f'v_lshrrev_b32 {v(T0)}, 30, {v(addr)}', f'v_or_b32 {v(T1)}, {v(T0)}, {v(reg)}', f'v_cmp_ne_u32 vcc, 1, {v(T1)}',
                          f's_cbranch_vccz {ok}'] + soff_lines + [f's_mov_b32 {s(s_t2)}, 0', f'{lp}:', 's_sleep 2',
                          f'buffer_load_dword {v(reg)}, {v(addr)}, {s(sWS,4)}, {s(soff)} offen sc1', f's_add_u32 {s(s_t2)}, {s(s_t2)}, 1', 's_waitcnt vmcnt(0)',
                          f'v_or_b32 {v(T1)}, {v(T0)}, {v(reg)}', f'v_cmp_ne_u32 vcc, 1, {v(T1)}', f's_cbranch_vccz {ok}',
                          f's_cmp_lt_u32 {s(s_t2)}, 0x40000', f's_cbranch_scc1 {lp}', f'{ok}:'])
    B0 = 6-PD
    win = lambda n: (B0+6*n+1, B0+6*n+7-PD)
    for sl in range(NSL):
        ph2 = sl >= 9; t = sl - 9
        fills = []
        if sl == 0:
            for k in range(YA, 36): fills.append((k-YA, k-YA+1, yload(k)))
            fills.append((36-YA, 37-YA, sqld))
        if sl == 1:
            fills.append((0, 3, [('WAIT', 'sq')] + rstd))
        if 1 <= sl <= 9:
            p = sl-1; a = ACC[p & 1]
            if p < 2:
                f = gelu_pack(a, a) + [f'ds_write_b128 {v(vX0)}, {v(a,4)} offset:{2048*p}', f'ds_write_b128 {v(vX0)}, {v(a+4,4)} offset:{2048*p+1024}']
            else:
                f = gelu_pack(a, own[p])
            fills.append((3, 36-PD if sl < 9 else 21, f))
        if 8 <= sl <= 16:
            fills.append((9, 11, slab_of(sl-8, s_jump) + [f's_lshl_b32 {s(s_jump)}, {s(s_jump)}, 7', f's_mul_i32 {s(s_t)}, {s(s_j)}, {576*P4}', f's_add_u32 {s(s_jump)}, {s(s_jump)}, {s(s_t)}']))
        if sl == 8:
            f = [f's_lshl_b32 {s(s_t)}, {s(s_c)}, 5', f's_lshl_b32 {s(s_t2)}, {s(s_r)}, 3', f's_add_u32 {s(s_t)}, {s(s_t)}, {s(s_t2)}'] + \
                [x.replace(v(TMP[0]), v(T0)).replace(v(TMP[1]), v(T1)) for x in lines(lambda B: matrix_lane_offsets(B, vD4, P4, s_t))]
            fills.append((3, 9, f))
            fills.append((11, 20, abase(vK, 4, T0, T1) + [f's_mul_i32 {s(s_t)}, {s(s_c)}, 6144', f'v_add_u32 {v(vK)}, {s(s_t)}, {v(vK)}', f'v_xor_b32 {v(vP)}, 6144, {v(vK)}']))
            fills.append((1, 3, [f's_lshl_b32 {s(s_t)}, {s(s_c)}, 14', f's_sub_u32 {s(s_t)}, 8192, {s(s_t)}', f'v_add_u32 {v(vX1)}, {s(s_t)}, {v(vX0)}']))
            fills.append((6, 10, xr((0, 1), own, vX0)))
            fills.append((10, win(1)[1], xr((0, 1), par, vX1)))
            fills.append(win(2) + (xw((2, 3)),)); fills.append(win(3) + (xr((2, 3), par, vX1),))
            fills.append(win(4) + (xw((4, 5)),)); fills.append((win(5)[0], min(36, win(5)[1]), xr((4, 5), par, vX1)))
        if sl == 9:
            fills.append((0, 1, [f"s_setprio {os.environ.get('PM2', 3)}"]))
            fills.append(win(0) + (xw((6, 7)),)); fills.append(win(1) + (xr((6, 7), par, vX1),))
            fills.append(win(3) + (xw((8,)),)); fills.append(win(4) + (xr((8,), par, vX1),))
            fills.append((24, 27, flag_regs(vOne, vOff)))
        if 1 <= t <= 8:
            fills.append((4, int(os.environ.get('EE', 16)), epilogue(t-1)))
        FL = int(os.environ.get('FL', 31))
        if FL < 36 and 1 <= t <= 8:
            fills.append((FL, FL+2, ([('WAIT', ('st', t-1))] if 'w' not in ABL else []) + set_flag(t-1)))
        if FL >= 36 and 2 <= t <= 9:
            fills.append((FL-36, FL-34, [('WAIT', ('st', t-2))] + set_flag(t-2)))
        if sl == 10:
            f = f"""v_and_b32 {v(T0)}, 31, {v(vln)}
            v_lshrrev_b32 {v(T1)}, 5, {v(vln)}
            v_lshlrev_b32 {v(T1)}, 3, {v(T1)}
            v_sub_u32 {v(T1)}, {v(T0)}, {v(T1)}
            v_ashrrev_i32 {v(T1)}, 1, {v(T1)}
            v_lshrrev_b32 {v(vMe)}, 1, {v(T0)}
            v_and_b32 {v(T0)}, 1, {v(T0)}
            v_lshlrev_b32 {v(T0)}, 4, {v(T0)}
            v_mov_b32 {v(vFl)}, 0x3f80
            v_lshlrev_b32 {v(T0)}, {v(T0)}, {v(vFl)}""".split('\n')
            for E, src, off in ((E0, T1, 0), (E1, T1, 8), (E8, vMe, 0)):
                for d in range(4): f.append(f'v_cmp_eq_u32 vcc, {d+off}, {v(src)}\ns_nop 1\nv_cndmask_b32 {v(E+d)}, 0, {v(T0)}, vcc')
            fills.append((20, 34, f))
        if sl == 11:
            f = f"""v_lshrrev_b32 {v(T0)}, 5, {v(vln)}
            v_bfe_u32 {v(T1)}, {v(vln)}, 2, 2
            v_lshl_add_u32 {v(T1)}, {v(T0)}, 3, {v(T1)}
            v_and_b32 {v(vWx)}, 1, {v(vln)}
            v_lshlrev_b32 {v(vWx)}, 3, {v(vWx)}
            v_lshl_add_u32 {v(vWx)}, {v(T1)}, 4, {v(vWx)}
            s_mul_i32 {s(s_t)}, {s(s_c)}, {18*256}
            s_add_u32 {s(s_t)}, {s(s_t)}, {L_STASH}
            v_add_u32 {v(vWx)}, {s(s_t)}, {v(vWx)}
            v_and_b32 {v(T1)}, 0x7fff, {v(vS2)}
            s_lshl_b32 {s(s_t)}, {s(s_c)}, 30
            v_or_b32 {v(T1)}, {s(s_t)}, {v(T1)}
            s_mov_b32 {s(s_t)}, {TSZ}
            v_mad_u32_u24 {v(vPx)}, {v(T0)}, {s(s_t)}, {v(T1)}
            s_mov_b32 {s(s_t)}, {TX-TY}
            v_mad_u32_u24 {v(vYx)}, {v(T0)}, {s(s_t)}, {v(T1)}
            v_and_b32 {v(T1)}, 0x7fff, {v(vS2)}
            v_mul_u32_u24 {v(vOut)}, 72, {v(T1)}
            v_lshrrev_b32 {v(vMe)}, 2, {v(T1)}
            v_lshlrev_b32 {v(vFl)}, 30, {v(T0)}
            v_lshl_add_u32 {v(vFl)}, {v(vln)}, 2, {v(vFl)}
            v_lshrrev_b32 {v(T1)}, 2, {v(vln)}
            v_min_u32 {v(T1)}, 1, {v(T1)}
            v_lshlrev_b32 {v(T1)}, 30, {v(T1)}
            v_lshl_add_u32 {v(vF1)}, {v(vln)}, 2, {v(T1)}
            s_mov_b32 {s(s_t)}, {MEAN}""".split('\n')
            fills.append((20, 30, f + [(f'buffer_load_dword {v(vMe)}, {v(vMe)}, {s(sWS,4)}, {s(s_t)} offen sc1', 'me')]))
        def gload(lines_, tag, dst):
            return lines_ + [(f'buffer_load_dwordx4 {v(dst,4)}, {v(vS2)}, {s(sWS,4)}, {s(s_cur)} offen sc1', tag), f's_add_u32 {s(s_cur)}, {s(s_cur)}, {2*GP}',
                             (f'buffer_load_dwordx4 {v(dst+4,4)}, {v(vS2)}, {s(sWS,4)}, {s(s_cur)} offen sc1', tag)]
        def gadd(tag, src_, acc, first=False):
            return [('WAIT', tag), f'v_mfma_f32_32x32x16_bf16 {v(acc,16)}, {v(E0,4)}, {v(src_,4)}, ' + ('0' if first else v(acc,16)),
                    f'v_mfma_f32_32x32x16_bf16 {v(acc,16)}, {v(E1,4)}, {v(src_+4,4)}, {v(acc,16)}']
        own_base = [f's_lshl_b32 {s(s_cur)}, {s(s_j)}, 18', f's_add_u32 {s(s_cur)}, {s(s_cur)}, {s(s_pa)}']
        def sib(tp, dst): return [f's_sub_u32 {s(dst)}, {s(s_j)}, {tp}', f's_and_b32 {s(dst)}, {s(dst)}, 7']
        def sib_flag(tp): return sib(tp, s_rbw) + [f's_lshl_b32 {s(s_rbw)}, {s(s_rbw)}, 4', f's_lshl_b32 {s(s_sig)}, {s(s_j)}, 7', f's_add_u32 {s(s_rbw)}, {s(s_rbw)}, {s(s_sig)}',
                                                   f's_add_u32 {s(s_rbw)}, {s(s_rbw)}, {s(s_pf)}', (f'buffer_load_dword {v(vFv)}, {v(vF1)}, {s(sWS,4)}, {s(s_rbw)} offen sc1', ('sf', tp))]
        def sib_src(tp): return [('WAIT', ('sf', tp)), flag_check(vFv, [], s_rbw, vF1)] + sib(tp, s_sig) + [f's_mul_i32 {s(s_sig)}, {s(s_sig)}, {TSZ}'] + own_base + \
                                [f's_add_u32 {s(s_cur)}, {s(s_cur)}, {s(s_sig)}']
        if t == 2:
            fills.append((0, 2, gload(own_base + [f's_add_u32 {s(s_cur)}, {s(s_cur)}, {(TY-PART) & 0xffffffff}'], 'gy', XF[0])))
            fills.append((16, 17, gadd('gy', XF[0], RA, True)))
            fills.append((30, 31, gload(own_base + [f's_add_u32 {s(s_cur)}, {s(s_cur)}, {(TX-PART) & 0xffffffff}'], ('gp', 0), XF[0])))
        gdst = lambda tp: XF[0] if tp < 6 else par[tp-6]
        if 3 <= t <= 9 and 'p' not in ABL:
            fills.append((GA, GA+1, gadd(('gp', t-3), gdst(t-3), RA if t < 8 else ACC[1])))
            fills.append((GF, GF+2, sib_flag(t-2)))
            fills.append((GF+14, GF+15, gload(sib_src(t-2), ('gp', t-2), gdst(t-2))))
        if sl == 13:
            f = [f's_mul_i32 {s(s_t2)}, {s(s_w)}, 2304', f's_mul_i32 {s(s_t)}, {s(s_j)}, 9216', f's_add_u32 {s(s_t)}, {s(s_t)}, {s(s_t2)}', f's_add_u32 {s(s_z)}, {s(s_t)}, {WOX}',
                 f'v_lshlrev_b32 {v(T0)}, 4, {v(vln)}', f'v_lshlrev_b32 {v(T1)}, 2, {v(vln)}']
            fills.append((20, 23, f))
            f = [f's_mul_i32 {s(s_t2)}, {s(s_w)}, 2304\ns_mov_b32 {s(s_zs)}, m0\ns_add_u32 m0, {s(s_t2)}, {L_STASH}\ns_nop 0',
                 (f'buffer_load_dwordx4 {v(T0)}, {s(sWS,4)}, {s(s_z)} offen lds', 'wx'), (f'buffer_load_dwordx4 {v(T0)}, {s(sWS,4)}, {s(s_z)} offen offset:1024 lds', 'wx'),
                 (f'buffer_load_dword {v(T1)}, {s(sWS,4)}, {s(s_z)} offen offset:2048 lds', 'wx'), f's_mov_b32 m0, {s(s_zs)}']
            fills.append((23, 24, f))
        if sl == 14:
            f = f"""v_lshrrev_b32 {v(T0)}, 3, {v(vln)}
            v_lshrrev_b32 {v(T1)}, 2, {v(T0)}
            v_mul_u32_u24 {v(T1)}, 68, {v(T1)}
            v_add_u32 {v(T1)}, {v(T1)}, {v(T0)}
            v_and_b32 {v(T0)}, 2, {v(T0)}
            v_lshl_add_u32 {v(T1)}, {v(T0)}, 3, {v(T1)}
            v_mul_u32_u24 {v(T1)}, {P4}, {v(T1)}
            v_lshlrev_b32 {v(T0)}, 1, {v(T0)}
            v_xor_b32 {v(T0)}, {v(T0)}, {v(vln)}
            v_and_b32 {v(T0)}, 7, {v(T0)}
            v_lshl_add_u32 {v(T1)}, {v(T0)}, 4, {v(T1)}
            v_mov_b32 {v(T0)}, {s(s_c)}
            v_cmp_eq_u32 vcc, 1, {v(T0)}\\ns_nop 1\\nv_cndmask_b32 {v(vD5)}, {v(vD4)}, {v(T1)}, vcc
            s_mul_i32 {s(s_z)}, {s(s_r)}, {36*P4}
            s_add_u32 {s(s_z)}, {s(s_z)}, {16*P4}
            s_cmp_eq_u32 {s(s_c)}, 1\\ns_cselect_b32 {s(s_z)}, {s(s_z)}, {14*18*P4}\\ns_mov_b32 {s(s_zs)}, {18*P4-1024}\\ns_cselect_b32 {s(s_zs)}, {144*P4-1024}, {s(s_zs)}
            s_lshl_b32 {s(s_t)}, {s(s_j)}, 7
            s_add_u32 {s(s_z)}, {s(s_z)}, {s(s_t)}
            s_sub_u32 {s(s_z)}, {s(s_z)}, 2048
            s_mov_b32 s8, {s(p_wo)}
            s_mov_b32 s9, {s(p_wo+1)}
            s_mov_b32 s10, {D*D*2}""".split('\n')
            fills.append((18, 29, [x.replace('\\n', '\n') for x in f]))
        def oload(n): return [(f'buffer_load_dwordx4 {v(oreg(n),4)}, {v(vS2)}, {s(sWS,4)}, {s(s_oo)} offen sc1', ('o', n)), f's_add_u32 {s(s_oo)}, {s(s_oo)}, {2*GP}']
        if sl == 16:
            fills.append((2, 3, [f's_add_u32 {s(s_oo)}, {s(s_pf)}, 1024', (f'buffer_load_dword {v(XF[2])}, {v(vFl)}, {s(sWS,4)}, {s(s_oo)} offen sc1', 'f8')]))
            fills.append((19, 20, [('WAIT', 'f8'), flag_check(XF[2], [], s_oo, vFl)]))
        if sl == 17:
            fills.append((9, 11, [f's_mul_i32 {s(s_jump)}, {s(s_c)}, {(324-32)*P4}', f's_lshl_b32 {s(s_t)}, {s(s_j)}, 7', f's_add_u32 {s(s_jump)}, {s(s_jump)}, {s(s_t)}']))
            fills.append((3, 4, [(f'buffer_load_dword {v(XF[2])}, {v(vFl)}, {s(sWS,4)}, {s(s_of)} offen sc1', 'of')]))
            fills.append((19, 20, [('WAIT', 'of'), flag_check(XF[2], [], s_of, vFl), f's_mul_i32 {s(s_oo)}, {s(s_c)}, {36*GP}', f's_add_u32 {s(s_oo)}, {s(s_oo)}, {TO}']))
            for n in range(OA): fills.append((20+2*n, 21+2*n, oload(n)))
            fills.append((36-PD, 37-PD, [f'v_xor_b32 {v(vZ)}, 64, {v(vK)}']))
            assert ABL or vm.done >= vm.tag['wx']
        if sl == 18:
            for n in range(OA, 18): fills.append((2*(n-OA), 2*(n-OA)+1, oload(n)))
            extras = []
            f = []
            for p in range(5):
                f += [f's_lshl_b32 {s(s_cur)}, {s(s_j)}, 15', f's_add_u32 {s(s_cur)}, {s(s_cur)}, {(PART+2*p*TSZ if p < 4 else TY) + 64*GP}',
                      (f'buffer_load_dwordx4 {v(par[2+p],4)}, {v(vPx if p < 4 else vYx)}, {s(sWS,4)}, {s(s_cur)} offen sc1', ('x', p))]
                extras.append(p)
            fills.append((4, 14, f))
        prog = [0]*len(fills)
        epi = next((i for i, f in enumerate(fills) if f[:2] == (4, int(os.environ.get('EE', 16)))), -1)
        for k in range(36):
            K = 36*sl + k; g = K//6
            nout = min(PD-1, NK-1-K)
            if sl == 0: vm.wait(('y', k))
            if sl == 18: vm.wait(('o', k//2))
            if W2S and 10 <= sl <= 16:
                if k % 2 == 0: A(f's_waitcnt lgkmcnt({2*(nout-1)})')
            else: A(f's_waitcnt lgkmcnt({2*nout})')
            init = '0'
            if not ph2: acc, b, first = ACC[sl & 1], Y+4*k, k == 0
            elif t <= 8:
                acc, b, first = ACC[(t+1) & 1], breg(k), k == 0
                if t == 8: init = v(RA,16)
            else: acc, b, first = (RA if k & 1 else ACC[1]), oreg(k//2), k == 1
            A(f'v_mfma_f32_32x32x16_bf16 {v(acc,16)}, {v(AFB[K % (PD+1)],4)}, {v(b,4)}, ' + (init if first else v(acc,16)))
            xn = k//2
            if sl == 18 and k & 1:
                A(f'v_mfma_f32_32x32x16_bf16 {v(ACC[0],16)}, {v(XF[xn % 3],4)}, {v(b,4)}, ' + ('0' if k == 1 else v(ACC[0],16)))
            def do_fills(valu):
                for fi, (a, z, f) in enumerate(fills):
                    if 'g' in ABL and len(f) > 100: continue
                    if k >= a and (ORDER == 'old' or (len(f) > 100 or fi == epi) == valu):
                        upto = min(len(f), -(-len(f)*(k-a+1)//(z-a)))
                        for ln in f[prog[fi]:upto]:
                            if isinstance(ln, tuple) and ln[0] == 'WAIT': vm.wait(ln[1])
                            else: vm.emit(ln)
                        prog[fi] = upto
            if ORDER == 'vfirst': do_fills(True)
            if k % 6 == B0 and g+1 < NG:
                if 'v' not in ABL: vm.wait(('slot', g+1))
                if 'b' not in ABL: A('s_barrier')
            if sl == 18 and k & 1 and xn+2 < 18:
                for ln in rdX(xn+2): A(ln)
            if sl == 17 and k >= 34:
                for ln in rdX(k-34): A(ln)
            if K+PD < NK and 'r' not in ABL:
                for ln in rdA(K+PD): A(ln)
            if ORDER == 'mid': do_fills(True)
            ph = (k - B0) % 6; gg = (K - B0)//6 + NR-1
            if ph % 2 == 0 and NR-1 <= gg < NG:
                for ln in piece(gg, ph//2):
                    if 'd' not in ABL: vm.emit(ln)
            do_fills(False)
            if TAIL == 1 and (sl, k) in ((17, 0), (18, 5)): stamp(A, 3 if sl == 17 else 5)
        assert all(p == len(f[2]) for p, f in zip(prog, fills)) or ABL
        if not TAIL:
            if sl == 8: stamp(A, 5)
            if sl == 17: stamp(A, 6)
        elif TAIL == 2:
            if sl in (0, 1, 7, 9, 11): stamp(A, {0: 2, 1: 3, 7: 4, 9: 5, 11: 6}[sl])
        elif TAIL == 1 and sl in (8, 16, 17, 18): stamp(A, {8: 1, 16: 2, 17: 4, 18: 6}[sl])
    a1, a0 = ACC[1], ACC[0]
    for p in extras:
        vm.wait(('x', p))
        A(f'v_mfma_f32_32x32x16_bf16 {v(a0,16)}, {v(E8,4)}, {v(par[2+p],4)}, {v(a0,16)}')
    A(f"""s_mov_b32 s8, {s(p_out)}
    s_mov_b32 s9, {s(p_out+1)}
    s_mov_b32 s10, {S*D*2}
    v_lshrrev_b32 {v(T0)}, 5, {v(vln)}
    v_lshl_add_u32 {v(vS2)}, {v(T0)}, 4, {v(vOut)}
    v_lshl_add_u32 {v(vOut)}, {v(T0)}, 3, {v(vOut)}
    s_lshl_b32 {s(s_st)}, {s(s_j)}, 1
    s_add_u32 {s(s_st)}, {s(s_st)}, {s(s_c)}
    s_lshl_b32 {s(s_st)}, {s(s_st)}, 6
    s_lshl_b32 {s(s_t)}, {s(s_j)}, 4
    s_lshl_b32 {s(s_t2)}, {s(s_c)}, 30
    s_add_u32 {s(s_t)}, {s(s_t)}, {s(s_t2)}
    v_subrev_u32 {v(T0)}, {L_STASH}, {v(vX0)}
    v_subrev_u32 {v(T1)}, {L_STASH}, {v(vX1)}
    s_barrier""")
    for q in range(4): A(f'ds_write_b128 {v(vX0)}, {v(RA+4*q,4)} offset:{1024*q}')
    A(f'ds_write_b128 {v(T0)}, {v(a0,4)}')
    A('s_waitcnt lgkmcnt(0)\ns_barrier')
    for q in range(4): A(f'ds_read_b128 {v(RA+4*q,4)}, {v(vX1)} offset:{1024*q}')
    A(f'ds_read_b128 {v(XF[0],4)}, {v(T1)}')
    vm.wait(('gp', 7))
    for ln in gadd(None, par[1], a1)[1:]: A(ln)
    A('s_waitcnt lgkmcnt(0)')
    for i in range(4):
        A(f'v_add_f32 {v(a0+i)}, {v(a0+i)}, {v(XF[0]+i)}\nv_add_f32 {v(a0+i)}, {v(a0+i)}, {v(vMe)}')
    A(f"""v_cvt_pk_bf16_f32 {v(a0)}, {v(a0)}, {v(a0+1)}
    v_cvt_pk_bf16_f32 {v(a0+1)}, {v(a0+2)}, {v(a0+3)}
    buffer_store_dwordx2 {v(a0,2)}, {v(vOut)}, {s(sM,4)}, {s(s_t)} offen offset:1024 {os.environ.get('OST', 'sc1')}""")
    for i in range(16): A(f'v_add_f32 {v(a1+i)}, {v(a1+i)}, {v(RA+i)}')
    for i in range(16): A(f'v_add_f32 {v(a1+i)}, {v(a1+i)}, {v(vMe)}')
    for i in range(8): A(f'v_cvt_pk_bf16_f32 {v(a1+i)}, {v(a1+2*i)}, {v(a1+2*i+1)}')
    for a in range(2):
        b = a1+4*a
        A(f"""v_permlane32_swap_b32 {v(b)}, {v(b+2)}
        v_permlane32_swap_b32 {v(b+1)}, {v(b+3)}
        buffer_store_dwordx4 {v(b,4)}, {v(vS2)}, {s(sM,4)}, {s(s_st)} offen offset:{32*a} {os.environ.get('OST', 'sc1')}""")
    if STAMPS: A('s_waitcnt vmcnt(0)')
    if TAIL != 3: stamp(A, 7)
    stamp_flush(A, STAMP + li*512*8*64, 2)
    A('s_endpgm')
```
